```python
import torch

def _softmax(x, axis=-1):
    return torch.softmax(x, dim=axis)
def _gelu(x):
    return torch.nn.functional.gelu(x, approximate="tanh")
def _silu(x):
    return torch.nn.functional.silu(x)
def _sigmoid(x):
    return torch.sigmoid(x)
def _layernorm(x, axis=-1, eps=1e-5):
    m = x.mean(dim=axis, keepdim=True)
    v = x.var(dim=axis, keepdim=True, unbiased=False)
    return (x - m) / torch.sqrt(v + eps)
def _scatter_add(tgt, idx, src, axis=0):
    return tgt.clone().index_add_(axis, idx, src)
def _segment_sum(src, seg, n):
    out = torch.zeros((n,) + src.shape[1:], dtype=src.dtype)
    return out.index_add_(0, seg, src)
def _pad(x, pw):
    flat = tuple(v for pair in reversed(pw) for v in pair)
    return torch.nn.functional.pad(x, flat)

kernel_name = 'recurrent_scan__gqa_block_cached__dense_activation_relu__prompt'

def setup_inputs():

    _w = (lambda a: (lambda t: t.to(torch.bfloat16) if t.is_floating_point() else t)(torch.as_tensor(a)))
    def _A_setup():
        B, Sq, D = 1, 2048, 512
        Hq, Hkv, Sk, Dh = 32, 8, 2048, 128
        assert Hq % Hkv == 0, (Hq, Hkv)
        return {
            "x": _w((lambda *s: torch.randn(*s, dtype=torch.bfloat16) * 0.05)(B, Sq, D)),
            "k_cache": _w((lambda *s: torch.randn(*s, dtype=torch.bfloat16) * 1.6)(B, Hkv, Sk, Dh)),
            "v_cache": _w((lambda *s: torch.randn(*s, dtype=torch.bfloat16) * 0.2)(B, Hkv, Sk, Dh)),
            "wq": _w((lambda *s: torch.randn(*s, dtype=torch.bfloat16) * 1.6)(D, Hq * Dh) * (D ** -0.5)),
            "wo": _w((lambda *s: torch.randn(*s, dtype=torch.bfloat16) * 0.2)(Hq * Dh, D) * ((Hq * Dh) ** -0.5)),
        }
    _A_in = _A_setup()

    def _B_setup():
        B, S, D, Dff = 1, 2048, 512, 1792
        return {
            "x": _w((lambda *s: torch.randn(*s, dtype=torch.bfloat16) * 0.05)(B, S, D)),
            "w1": _w((lambda *s: torch.randn(*s, dtype=torch.bfloat16) * 0.1)(D, Dff)),
            "w2": _w((lambda *s: torch.randn(*s, dtype=torch.bfloat16) * 0.1)(Dff, D)),
        }
    _B_in = _B_setup()

    return {
        "A_x": _A_in["x"],
        "A_k_cache": _A_in["k_cache"],
        "A_v_cache": _A_in["v_cache"],
        "A_wq": _A_in["wq"],
        "A_wo": _A_in["wo"],
        "B_x": _B_in["x"],
        "B_w1": _B_in["w1"],
        "B_w2": _B_in["w2"],
    }

def reference(A_x, A_k_cache, A_v_cache, A_wq, A_wo, B_x, B_w1, B_w2):
    def _A_ref(x, k_cache, v_cache, wq, wo):
        B, Sq, D = x.shape
        Hq, Dh = 32, 128
        Hkv = k_cache.shape[1]
        rep = Hq // Hkv
        q = (lambda x, *d: x.permute(*d))((x @ wq).reshape(B, Sq, Hq, Dh), 0, 2, 1, 3)
        k = (lambda x, n, axis: torch.repeat_interleave(x, n, dim=axis))(k_cache, rep, axis=1)
        v = (lambda x, n, axis: torch.repeat_interleave(x, n, dim=axis))(v_cache, rep, axis=1)
        scores = torch.einsum("bhqd,bhkd->bhqk", q, k) * (Dh ** -0.5)
        p = _softmax(scores, axis=-1)
        o = torch.einsum("bhqk,bhkd->bhqd", p, v)
        return (lambda x, *d: x.permute(*d))(o, 0, 2, 1, 3).reshape(B, Sq, Hq * Dh) @ wo

    def _B_ref(x, w1, w2):
        h = torch.einsum("bsd,df->bsf", x, w1)
        zero = torch.zeros_like(h)
        h = torch.maximum(h, zero)
        return torch.einsum("bsf,fd->bsd", h, w2)

    x = A_x
    xn = _layernorm(x, axis=-1)
    s = _A_ref(xn, A_k_cache, A_v_cache, A_wq, A_wo)
    g = _silu(_B_ref(xn, B_w1, B_w2))
    return x + s * g
```

```python
import re

REG_RE = re.compile(r'^(-|abs\()?([vas])(?:\[(\d+):(\d+)\]|(\d+))\)?$')

def parse_reg(tok):
    tok = tok.strip()
    m = REG_RE.match(tok)
    if m:
        f = m.group(2)
        if m.group(3) is not None:
            return [(f, i) for i in range(int(m.group(3)), int(m.group(4)) + 1)]
        return [(f, int(m.group(5)))]
    if tok in ('vcc', 'exec', 'm0', 'scc'):
        return [(tok, 0)]
    return []

TRANS = ('v_exp_f32', 'v_log_f32', 'v_rcp_f32', 'v_rsq_f32', 'v_sqrt_f32')

class Ins:
    __slots__ = ('text', 'op', 'kind', 'rd', 'wr', 'srcc', 'srcab', 'tag', 'nops', 'dpp', 'data')
    def __init__(self, text, tag=None):
        self.text = text
        self.tag = tag
        t = text.split(';')[0].strip()
        parts = t.split(None, 1)
        self.op = op = parts[0]
        rest = parts[1] if len(parts) > 1 else ''
        ops = [o.strip() for o in rest.split(',')] if rest else []
        if 'quad_perm' in rest or 'op_sel' in rest or 'neg_lo' in rest:
            cut = min(x for x in (rest.find('quad_perm'), rest.find('op_sel'), rest.find('neg_lo')) if x >= 0)
            ops = [o.strip() for o in rest[:cut].split(',')]
        toks = []
        for o in ops:
            toks.append(o.split()[0] if o.split() else '')
        self.dpp = ('quad_perm' in rest or 'row_' in rest)
        regs = [parse_reg(x) for x in toks]
        self.rd, self.wr, self.srcc, self.srcab, self.data = set(), set(), set(), set(), set()
        self.nops = 1
        if op.endswith(':') or op.startswith('.'):
            self.kind = 'label'; self.nops = 0
        elif op.startswith('v_mfma'):
            self.kind = 'mfma16' if '16x16x32' in op else 'mfma32'
            self.wr = set(regs[0]); self.srcab = set(regs[1]) | set(regs[2]); self.srcc = set(regs[3])
            self.rd = self.srcab | self.srcc
        elif op.startswith('ds_read'):
            self.kind = 'ds_read'; self.wr = set(regs[0]); self.rd = set(regs[1])
        elif op.startswith('ds_write'):
            self.kind = 'ds_write'
            for r in regs: self.rd |= set(r)
        elif op.startswith('buffer_load') or op.startswith('global_load'):
            if re.search(r'\blds\b', rest) or 'load_lds' in op:
                self.kind = 'dma'
                for r in regs: self.rd |= set(r)
                self.rd.add(('m0', 0))
            else:
                self.kind = 'vload'; self.wr = set(regs[0])
                for r in regs[1:]: self.rd |= set(r)
        elif op.startswith('buffer_store') or op.startswith('global_store'):
            self.kind = 'vstore'
            for r in regs: self.rd |= set(r)
            self.data = set(regs[0]) if op.startswith('buffer') else set(regs[1])
        elif op == 's_waitcnt':
            self.kind = 'wait'
        elif op == 's_nop':
            self.kind = 'nop'; self.nops = int(toks[0]) + 1
        elif op == 's_barrier':
            self.kind = 'barrier'
        elif op.startswith('s_load') or op in ('s_memtime', 's_memrealtime'):
            self.kind = 'smem'; self.wr = set(regs[0])
            for r in regs[1:]: self.rd |= set(r)
        elif op.startswith('s_'):
            self.kind = 'salu'
            if op.startswith('s_cmp') or op.startswith('s_cbranch') or op in ('s_branch', 's_endpgm', 's_setprio', 's_sleep'):
                for r in regs: self.rd |= set(r)
            else:
                if regs: self.wr = set(regs[0])
                for r in regs[1:]: self.rd |= set(r)
        elif op.startswith('v_'):
            self.kind = 'trans' if op.replace('_e32', '').replace('_e64', '') in TRANS else 'valu'
            if op.startswith('v_dot'): self.kind = 'dot'
            self.wr = set(regs[0])
            for r in regs[1:]: self.rd |= set(r)
            if op.startswith('v_permlane') and 'swap' in op:
                self.wr |= set(regs[1]); self.rd |= set(regs[0]); self.kind = 'perm'
            if op.startswith('v_fmac') or op.startswith('v_dot2c') or op.startswith('v_writelane'):
                self.rd |= set(regs[0])
            if self.dpp: self.rd |= set(regs[0])
        else:
            raise ValueError('unknown instr: ' + text)

VALUISH = ('valu', 'trans', 'dot', 'perm')

class Asm:
    def __init__(self):
        self.lines = []
        self.trace = []
        self.vm = []
        self.trace_on = True
    def raw(self, text):
        self.lines.append(text)
    def e(self, text, tag=None):
        i = Ins(text, tag)
        self.lines.append(('' if i.kind == 'label' else '  ') + text)
        if self.trace_on: self.trace.append(i)
        if i.kind in ('dma', 'vload', 'vstore'):
            self.vm.append(tag)
        if i.kind == 'wait':
            m = re.search(r'vmcnt\((\d+)\)', text)
            if m:
                n = int(m.group(1))
                if n < len(self.vm): self.vm = self.vm[len(self.vm) - n:] if n else []
        return i
    def vm_count_for(self, tags):
        last = -1
        for k, t in enumerate(self.vm):
            if t in tags: last = k
        if last < 0: return None
        return len(self.vm) - 1 - last
    def wait_vm_text(self, tags):
        n = self.vm_count_for(tags)
        if n is None: return None
        assert n <= 63, n
        return f's_waitcnt vmcnt({n})'
    def wait_vm(self, tags):
        t = self.wait_vm_text(tags)
        if t: self.e(t)
    def mark(self):
        return len(self.trace)
    def repeat_trace(self, start):
        self.trace.extend(self.trace[start:])
    def text(self):
        return '\n'.join(self.lines) + '\n'

def check(trace, verbose=True):
    errs = []
    n = len(trace)
    WIN = 24
    for i, c in enumerate(trace):
        if c.kind in ('label', 'nop', 'wait', 'barrier'): continue
        dist = 0
        j = i - 1
        while j >= 0 and dist < WIN:
            p = trace[j]
            need = 0; why = ''
            crw = c.rd | c.wr
            if p.kind in ('mfma16', 'mfma32'):
                four = p.kind == 'mfma16'
                if c.kind in ('mfma16', 'mfma32'):
                    if p.wr & c.srcab: need, why = (8 if four else 12), 'mfmaD->AB'
                    elif p.wr & c.srcc and (p.wr != c.srcc or p.kind != c.kind): need, why = (6 if four else 10), 'mfmaD->C overlap'
                elif c.kind in VALUISH:
                    if p.wr & crw: need, why = (8 if four else 12), 'mfmaD->valu'
                    elif p.srcc & c.wr: need, why = (3 if four else 7), 'mfmaC WAR'
                elif c.kind in ('ds_read', 'ds_write', 'vload', 'vstore', 'dma'):
                    if p.wr & crw: need, why = (8 if four else 12), 'mfmaD->mem'
            elif p.kind in VALUISH:
                vw = {r for r in p.wr if r[0] in 'va' and len(r[0]) == 1}
                sw = {r for r in p.wr if r[0] in ('s', 'vcc')}
                if c.kind in ('mfma16', 'mfma32') and vw & c.rd: need, why = (3 if p.kind == 'dot' else 2), 'valu->mfma'
                if p.kind == 'trans' and c.kind in ('valu', 'dot', 'perm') and vw & c.rd: need, why = max(need, 1), 'trans->valu'
                if p.kind == 'dot' and vw & crw and not (c.op == p.op and not (vw & (c.rd - set(parse_reg(c.text.split(',')[-1].split()[0]))))): need, why = max(need, 3), 'dot->other'
                if c.kind == 'perm' and vw & c.rd: need, why = max(need, 2), 'valu->permlane'
                if c.dpp and vw & c.rd: need, why = max(need, 2), 'valu->dpp'
                if c.op.startswith('v_readfirstlane') or c.op.startswith('v_readlane'):
                    if vw & c.rd: need, why = max(need, 1), 'valu->readlane'
                if sw & c.rd:
                    if c.kind in ('vload', 'vstore', 'dma'): need, why = max(need, 5), 'valu sgpr->vmem'
                    elif c.kind in VALUISH: need, why = max(need, 2), 'valu sgpr->valu'
            elif p.kind == 'salu':
                if ('m0', 0) in p.wr and (c.kind == 'dma' or c.op.startswith('v_writelane') and ('m0', 0) in c.rd): need, why = 1, 'm0->dma'
            elif p.kind == 'vstore':
                if len(p.data) > 2 and p.data & c.wr: need, why = (2 if c.kind in VALUISH else 1), 'store data WAR'
            if need > dist:
                errs.append(f'HAZARD {why}: need {need} have {dist}: [{p.text}] -> [{c.text}] @{i}')
            dist += p.nops
            j -= 1
    lg = []
    vmq = []
    smem_out = False
    for i, c in enumerate(trace):
        if c.kind == 'wait':
            m = re.search(r'lgkmcnt\((\d+)\)', c.text)
            if m:
                k = int(m.group(1))
                if smem_out and k > 0:
                    errs.append(f'counted lgkmcnt with smem outstanding @{i}')
                lg = lg[len(lg) - k:] if 0 < k < len(lg) else ([] if k == 0 else lg)
                if k == 0: smem_out = False
            m = re.search(r'vmcnt\((\d+)\)', c.text)
            if m:
                k = int(m.group(1))
                vmq = vmq[len(vmq) - k:] if 0 < k < len(vmq) else ([] if k == 0 else vmq)
            continue
        use = c.rd | c.wr
        for d, t in lg:
            if d & use: errs.append(f'LGKM not waited: [{t}] -> [{c.text}] @{i}')
        for d, t in vmq:
            if d & use: errs.append(f'VM not waited: [{t}] -> [{c.text}] @{i}')
        if c.kind == 'barrier':
            for d, t in lg:
                if t.startswith('ds_write'): errs.append(f'barrier with ds_write outstanding [{t}] @{i}')
        if c.kind in ('ds_read', 'ds_write'):
            lg.append((set(c.wr), c.text))
        elif c.kind == 'smem':
            lg.append((set(c.wr), c.text)); smem_out = True
        elif c.kind in ('vload', 'vstore', 'dma'):
            vmq.append((set(c.wr), c.text))
            if len(vmq) > 63: errs.append(f'vmcnt overflow @{i}')
    if verbose:
        seen = set()
        for x in errs:
            key = x.split('@')[0]
            if key not in seen:
                seen.add(key); print(x)
    return errs
```

```python
import sys, struct
from asmlib import Asm, check

NAME = "recurrent_scan__gqa_block_cached__dense_activation_relu__prompt"
OPT = dict(stamps=False, force_redo=False, dbg=None)
for a_ in sys.argv[2:]:
    k, _, v = a_.partition('=')
    OPT[k] = eval(v) if v else True

def f2u(x): return struct.unpack('<I', struct.pack('<f', x))[0]
CSCALE = 1.4426950408889634 * (128 ** -0.5)

S_X, S_K, S_V, S_WQ, S_WO, S_W1, S_W2, S_WS = 8, 12, 16, 20, 24, 28, 32, 36
sG, sQB, sWV = 40, 41, 42
sRING = 43
sWQO, sW1O, sW2O, sWOO = 44, 45, 46, 47
sT0, sT1, sT2, sT3 = 48, 49, 50, 51
sKVO = 52
sWV8K = 53
sIT = 54
sREDO = 55
sPART = 56
sKV0 = 57
sCNT = 58
def srd(b): return f's[{b}:{b+3}]'

vLANE = 255
vA = [232, 233, 234, 235]
vAH = [236, 237, 238, 239]
vB = [240, 241]
vLIN = 242
vO1K = [243, 244, 245, 246]
vOWQ = [247, 248, 249, 250]
vOW1 = [251, 252, 253, 254]
vK = [180, 181, 182, 183]
vV = [184, 185, 186, 187]
vOK = [188, 189, 190, 191]
vOV = [192, 193]
vL = [176, 177, 178, 179]
vNEG = 160
vS = 128
vSTAMP = 231
vRS = [224, 225, 226, 227]
aO, aQ = 0, 128
aKF = [192, 240]
aVF = [208, 224]
aAF = [192, 208]
aBF = [224, 240]

LDS_K = [32768, 0]
LDS_V = [98304, 131072]
LDS_RSTD = 28672
WS_Y = 16777216
WS_RSTD = 33554432
WS_STAMP = 40 << 20

def R(f, b, n=4): return f'{f}[{b}:{b+n-1}]'
def mfma(df, d, af, a, bf, b, c=None):
    cs = R(df, d) if c is None else c
    return f'v_mfma_f32_16x16x32_bf16 {R(df, d)}, {R(af, a)}, {R(bf, b)}, {cs}'

A = Asm()
e = A.e
nstamp = [0]
def stamp():
    if not OPT['stamps']: return
    i = nstamp[0]; nstamp[0] += 1
    e('s_memtime s[90:91]'); e('s_waitcnt lgkmcnt(0)'); e(f'v_writelane_b32 v{vSTAMP}, s90, {i}')

def emit_gaps(mf, plan):
    for i, m in enumerate(mf):
        e(m)
        for x in plan.get(i, []):
            if callable(x): x()
            elif isinstance(x, tuple): e(x[0], x[1])
            else: e(x)

def mk_srd(b, p, size):
    e(f's_mov_b32 s{b}, s{p}'); e(f's_and_b32 s{b+1}, s{p+1}, 0xffff')
    e(f's_mov_b32 s{b+2}, {size}'); e(f's_mov_b32 s{b+3}, 0x20000')

def unit_lds(slot):
    return (slot >> 1) * 32768 + (slot & 1) * 4096
def unit_dma_setup(u):
    base = {'wq': sWQO, 'w1': sW1O, 'w2': sW2O, 'wo': sWOO}[u['kind']]
    stride = {'wq': 8192, 'w1': 3584, 'w2': 1024, 'wo': 1024}[u['kind']]
    off = u['k0'] * stride + u['colb']
    return [f's_add_u32 m0, s{sRING}, {unit_lds(u["slot"])}', f's_add_u32 s{sT0}, s{base}, {off}']
def unit_dma(u, i):
    vo = {'wq': vOWQ, 'w1': vOW1, 'w2': vO1K, 'wo': vO1K}[u['kind']][i]
    sr = {'wq': S_WQ, 'w1': S_W1, 'w2': S_W2, 'wo': S_WO}[u['kind']]
    off = f' offset:{1024*i}' if i else ''
    return (f'buffer_load_dwordx4 v{vo}, {srd(sr)}, s{sT0} offen{off} lds', u['tag'])
def unit_reads(u, buf):
    out = []
    sl = u['slot']
    for nt in range(4):
        for h in range(2):
            if sl < 4: va, off = vA[nt], unit_lds(sl) + h * 2048
            else: va, off = vAH[nt], (sl & 1) * 4096 + h * 2048
            out.append(f'ds_read_b64_tr_b16 {R("a", aAF[buf] + nt*4 + h*2, 2)}, v{va} offset:{off}')
    return out
def emit_unit_dma_now(u):
    for x in unit_dma_setup(u): e(x)
    for i in range(4):
        t = unit_dma(u, i); e(t[0], t[1])

def gemm_units(units, first, last, breads, extra=None):
    for i in range(first, last):
        u = units[i]
        mf = []
        for nt in range(4):
            for qt in range(4):
                d = u['acc'] + (nt * 4 + qt) * 4
                mf.append(mfma('v', d, 'a', aAF[i & 1] + nt * 4, 'a', aBF[u['bbuf']] + qt * 4, '0' if u['czero'] else None))
        plan = {g: [] for g in range(16)}
        nxt = units[i + 1] if i + 1 < len(units) else None
        pre = units[i + 6] if i + 6 < len(units) and not units[i + 6].get('predma') else None
        lds = []
        if nxt is not None:
            plan[0].append(lambda n=nxt: A.wait_vm([n['tag']]))
            lds += unit_reads(nxt, (i + 1) & 1)
        lds += breads(i)
        lg = [0, 1, 2, 4, 5, 6, 8, 9, 10, 12, 13, 14]
        assert len(lds) <= 12
        for g, x in zip(lg, lds): plan[g].append(x)
        if pre is not None:
            s = unit_dma_setup(pre)
            plan[1].insert(0, s[0]); plan[2].insert(0, s[1])
            for j, g in enumerate((3, 7, 11, 15)): plan[g].append(unit_dma(pre, j))
        if extra: extra(i, plan)
        e('s_waitcnt lgkmcnt(0)')
        emit_gaps(mf, plan)

def gen_main():
    A.raw(f'.text\n.globl main_kernel\n.p2align 8\n.type main_kernel,@function')
    e('main_kernel:')
    e('s_cmp_ge_u32 s2, 256'); e('s_cbranch_scc1 L_main_end')
    e('s_load_dwordx16 s[64:79], s[0:1], 0')
    e('s_load_dwordx2 s[80:81], s[0:1], 80')
    e('s_getpc_b64 s[82:83]')
    e('L_pc0:')
    e(f'v_and_b32 v{vLANE}, 63, v0')
    e('v_lshrrev_b32 v1, 6, v0')
    e(f's_and_b32 s{sG}, s2, 7'); e(f's_lshr_b32 s{sQB}, s2, 3')
    e(f'v_readfirstlane_b32 s{sWV}, v1')
    if OPT['stamps']: e(f'v_mov_b32 v{vSTAMP}, 0')
    e(f'v_lshrrev_b32 v2, 2, v{vLANE}'); e('v_lshlrev_b32 v3, 10, v2')
    e(f'v_and_b32 v4, 2, v{vLANE}'); e('v_lshl_add_u32 v3, v4, 5, v3')
    e(f'v_and_b32 v5, 1, v{vLANE}'); e('v_lshl_add_u32 v3, v5, 4, v3')
    e(f's_lshl_b32 s{sT0}, s{sQB}, 16'); e(f's_lshl_b32 s{sT1}, s{sWV}, 14'); e(f's_add_u32 s{sT0}, s{sT0}, s{sT1}')
    e('s_waitcnt lgkmcnt(0)')
    stamp()
    mk_srd(S_X, 64, 2097152)
    for jj in range(8):
        for i in range(2):
            e(f'buffer_load_dwordx4 {R("v", 128 + (jj*2+i)*4)}, v3, {srd(S_X)}, s{sT0} offen offset:{jj*128 + i*32}', 'x')
    mk_srd(S_WQ, 70, 4194304); mk_srd(S_W1, 76, 1835008)
    e('v_lshrrev_b32 v6, 4, v0'); e('v_and_b32 v7, 15, v0')
    e('v_lshlrev_b32 v6, 13, v6'); e('v_lshl_add_u32 v6, v7, 6, v6')
    e(f's_lshl_b32 s{sT1}, s{sQB}, 17'); e(f's_lshl_b32 s{sT2}, s{sG}, 10'); e(f's_add_u32 s{sT1}, s{sT1}, s{sT2}')
    e(f'buffer_load_dword v200, v6, {srd(S_WQ)}, s{sT1} offen', 'warm')
    e('v_lshrrev_b32 v6, 4, v0'); e(f'v_mul_u32_u24 v6, 3584, v6'); e('v_lshl_add_u32 v6, v7, 5, v6')
    e(f's_mul_i32 s{sT1}, s{sQB}, {16*3584}'); e(f's_mul_i32 s{sT2}, s{sG}, 448'); e(f's_add_u32 s{sT1}, s{sT1}, s{sT2}')
    e(f'buffer_load_dword v201, v6, {srd(S_W1)}, s{sT1} offen', 'warm')
    e(f's_lshl_b32 s{sWV8K}, s{sWV}, 13')
    e(f's_add_u32 s{sRING}, s{sWV8K}, 65536')
    e(f's_lshl_b32 s{sT1}, s{sWV}, 8')
    e(f's_lshl_b32 s{sWQO}, s{sG}, 10'); e(f's_add_u32 s{sWQO}, s{sWQO}, s{sT1}')
    e(f's_lshl_b32 s{sW1O}, s{sWV}, 7'); e(f's_add_u32 s{sW1O}, s{sW1O}, s{sT2}')
    e(f's_mul_i32 s{sW2O}, s{sG}, {224*1024}'); e(f's_add_u32 s{sW2O}, s{sW2O}, s{sT1}')
    e(f's_lshl_b32 s{sWOO}, s{sG}, 19'); e(f's_add_u32 s{sKV0}, s{sWOO}, s{sWV8K}'); e(f's_add_u32 s{sWOO}, s{sWOO}, s{sT1}')
    e(f'v_lshrrev_b32 v6, 3, v{vLANE}')
    e(f'v_lshrrev_b32 v7, 4, v{vLANE}'); e('v_lshlrev_b32 v7, 1, v7')
    e(f'v_and_b32 v8, 7, v{vLANE}'); e('v_xor_b32 v8, v8, v7')
    e('v_lshlrev_b32 v9, 4, v8')
    e(f'v_lshl_add_u32 v{vOWQ[0]}, v6, 13, v9')
    e(f'v_lshl_add_u32 v{vO1K[0]}, v6, 10, v9')
    e('v_mul_u32_u24 v10, 3584, v6'); e(f'v_add_u32 v{vOW1[0]}, v10, v9')
    e(f's_cmp_eq_u32 s{sWV}, 3'); e(f's_cselect_b32 s{sT3}, 4, 8')
    e(f'v_cmp_le_u32 vcc, s{sT3}, v8')
    e('v_mov_b32 v10, 0x40000000')
    e('s_nop 0')
    e(f'v_cndmask_b32 v{vOW1[0]}, v{vOW1[0]}, v10, vcc')
    for i in range(1, 4):
        e(f'v_add_u32 v{vOWQ[i]}, {i*(8*8192-1024)}, v{vOWQ[0]}')
        e(f'v_add_u32 v{vOW1[i]}, {i*(8*3584-1024)}, v{vOW1[0]}')
        e(f'v_add_u32 v{vO1K[i]}, {i*(8*1024-1024)}, v{vO1K[0]}')
    units = []
    for ks in range(16):
        units.append(dict(kind='wq', k0=32*ks, colb=0, acc=0, czero=ks == 0, bbuf=ks & 1, ks=ks))
        units.append(dict(kind='wq', k0=32*ks, colb=128, acc=64, czero=ks == 0, bbuf=ks & 1, ks=ks))
        units.append(dict(kind='w1', k0=32*ks, colb=0, acc=128, czero=ks == 0, bbuf=ks & 1, ks=ks))
    for ks in range(7):
        for h in range(2):
            units.append(dict(kind='w2', k0=32*ks, colb=128*h, acc=64*h, czero=ks == 0, bbuf=ks & 1, ks=ks))
    for i, u in enumerate(units): u['slot'] = i % 6; u['tag'] = f'u{i}'
    for i in range(6): emit_unit_dma_now(units[i])
    mk_srd(S_K, 66, 4194304); mk_srd(S_V, 68, 4194304); mk_srd(S_WO, 72, 4194304); mk_srd(S_W2, 78, 1835008)
    mk_srd(S_WS, 80, 64 << 20)
    e('v_lshlrev_b32 v6, 6, v0')
    e(f's_lshl_b32 s{sT1}, s{sQB}, 11')
    e(f'v_lshlrev_b32 v7, 3, v0'); e(f'v_add_u32 v7, s{sT1}, v7')
    e('v_min_u32 v7, L_comb_end-L_pc0, v7')
    e('global_load_dword v202, v7, s[82:83]', 'warm')
    e(f's_mul_i32 s{sT1}, s{sQB}, 7168'); e(f's_mul_i32 s{sT2}, s{sG}, {224*1024}'); e(f's_add_u32 s{sT1}, s{sT1}, s{sT2}')
    e('v_lshlrev_b32 v7, 5, v0')
    e(f'buffer_load_dword v203, v7, {srd(S_W2)}, s{sT1} offen', 'warm')
    e(f's_lshl_b32 s{sT1}, s{sQB}, 14'); e(f's_lshl_b32 s{sT2}, s{sG}, 19'); e(f's_add_u32 s{sT1}, s{sT1}, s{sT2}')
    e(f'buffer_load_dword v204, v6, {srd(S_K)}, s{sT1} offen', 'warm')
    e(f'buffer_load_dword v205, v6, {srd(S_V)}, s{sT1} offen', 'warm')
    e(f'buffer_load_dword v206, v6, {srd(S_WO)}, s{sT1} offen', 'warm')
    e(f'v_lshrrev_b32 v6, 4, v{vLANE}')
    e(f'v_bfe_u32 v7, v{vLANE}, 2, 2')
    e(f'v_and_b32 v8, 3, v{vLANE}')
    e(f'v_bfe_u32 v9, v{vLANE}, 3, 2')
    e('v_lshlrev_b32 v10, 3, v8'); e('v_lshl_add_u32 v10, v7, 7, v10'); e('v_lshl_add_u32 v10, v9, 5, v10')
    e('v_lshl_add_u32 v11, v6, 9, v10'); e(f'v_add_u32 v11, s{sRING}, v11')
    for i in range(4):
        e(f'v_xor_b32 v{vA[i]}, {i*32}, v11')
        e(f'v_add_u32 v{vAH[i]}, 0x10000, v{vA[i]}')
    e(f'v_lshlrev_b32 v{vLIN}, 4, v{vLANE}')
    e(f'v_lshrrev_b32 v12, 5, v{vLANE}'); e(f'v_lshl_add_u32 v12, v12, 1, v{vLANE}')
    for par in range(2):
        e(f'v_add_u32 v13, {4*par}, v12'); e('v_and_b32 v13, 15, v13'); e('v_lshlrev_b32 v13, 4, v13')
        e(f'v_lshl_add_u32 v{vB[par]}, v6, 8, v13')
    e(f'v_lshrrev_b32 v13, 2, v{vLANE}'); e('v_lshl_add_u32 v13, v8, 1, v13'); e('v_and_b32 v13, 15, v13'); e('v_lshlrev_b32 v13, 4, v13')
    e('v_lshl_add_u32 v14, v8, 9, v13')
    e(f's_lshl_b32 s{sT1}, s{sWV}, 14'); e(f'v_add_u32 v14, s{sT1}, v14')
    e(f's_lshl_b32 s{sPART}, s{sG}, 21'); e(f's_lshl_b32 s{sT2}, s{sQB}, 16'); e(f's_add_u32 s{sPART}, s{sPART}, s{sT2}'); e(f's_add_u32 s{sPART}, s{sPART}, s{sT1}')
    e(f's_mov_b32 s{sREDO}, 0')
    for i in range(128): e(f'v_accvgpr_write_b32 a{aO+i}, 0')
    e('v_mov_b32 v16, 0x3f803f80')
    for i in range(4): e(f'v_mov_b32 v{20+i}, 0')
    A.wait_vm(['x'])
    stamp()
    for i in range(64): e(f'v_dot2_f32_bf16 v{20 + (i & 3)}, v{128+i}, v16, v{20 + (i & 3)}')
    e('s_nop 2')
    e('v_add_f32 v20, v20, v21'); e('v_add_f32 v22, v22, v23'); e('v_add_f32 v20, v20, v22')
    e('s_nop 1'); e('v_add_f32 v20, v20, v20 quad_perm:[1,0,3,2] row_mask:0xf bank_mask:0xf')
    e('s_nop 1'); e('v_add_f32 v20, v20, v20 quad_perm:[2,3,0,1] row_mask:0xf bank_mask:0xf')
    e(f'v_mul_f32 v20, {f2u(1/512):#x}, v20')
    e('v_cvt_pk_bf16_f32 v21, v20, v20'); e('v_and_b32 v21, 0xffff0000, v21')
    e('v_sub_f32 v18, 0, v21'); e('v_sub_f32 v19, 0, v21')
    e('v_sub_f32 v20, v20, v21')
    for i in range(4): e(f'v_mov_b32 v{24+i}, 0')
    for jj in range(8):
        ob = 40 + (jj & 1) * 8
        for i in range(2):
            for r in range(4):
                src = 128 + (jj*2+i)*4 + r
                t = 32 + ((i*4 + r) & 3) * 2
                dst = ob + (r >> 1) * 4 + i * 2 + (r & 1)
                e(f'v_lshlrev_b32 v{t}, 16, v{src}'); e(f'v_and_b32 v{t+1}, 0xffff0000, v{src}')
                e(f'v_pk_add_f32 v[{t}:{t+1}], v[{t}:{t+1}], v[18:19]')
                ac = 24 + (r & 1) * 2
                e(f'v_pk_fma_f32 v[{ac}:{ac+1}], v[{t}:{t+1}], v[{t}:{t+1}], v[{ac}:{ac+1}]')
                e(f'v_cvt_pk_bf16_f32 v{dst}, v{t}, v{t+1}')
        e(f'ds_write_b128 v14, {R("v", ob)} offset:{jj*2048}')
        e(f'ds_write_b128 v14, {R("v", ob+4)} offset:{jj*2048+256}')
    e('v_add_f32 v24, v24, v25'); e('v_add_f32 v26, v26, v27'); e('v_add_f32 v24, v24, v26')
    e('s_nop 1'); e('v_add_f32 v24, v24, v24 quad_perm:[1,0,3,2] row_mask:0xf bank_mask:0xf')
    e('s_nop 1'); e('v_add_f32 v24, v24, v24 quad_perm:[2,3,0,1] row_mask:0xf bank_mask:0xf')
    e(f'v_mul_f32 v24, {f2u(1/512):#x}, v24')
    e('v_fma_f32 v24, -v20, v20, v24')
    e('v_max_f32 v24, 0, v24')
    e('v_cvt_pk_bf16_f32 v24, v24, v24'); e('v_and_b32 v24, 0xffff0000, v24')
    e(f'v_add_f32 v24, {f2u(1e-5):#x}, v24')
    e('v_cvt_pk_bf16_f32 v24, v24, v24'); e('v_and_b32 v24, 0xffff0000, v24')
    e('v_sqrt_f32 v24, v24'); e('s_nop 0')
    e('v_cvt_pk_bf16_f32 v24, v24, v24'); e('v_and_b32 v24, 0xffff0000, v24')
    e('v_rcp_f32 v228, v24')
    A.wait_vm(['u0'])
    for x in unit_reads(units[0], 0): e(x)
    e('s_waitcnt lgkmcnt(0)'); e('s_barrier')
    stamp()
    def bread1(ks): return [f'ds_read_b128 {R("a", aBF[ks & 1] + qt*4)}, v{vB[ks & 1]} offset:{(qt*16+ks)*1024}' for qt in range(4)]
    for x in bread1(0): e(x)
    def breads_g1(i):
        ks, p = divmod(i, 3)
        if ks + 1 >= 16: return []
        b = bread1(ks + 1)
        return {0: [], 1: b[:2], 2: b[2:]}[p]
    gemm_units(units, 0, 48, breads_g1)
    stamp()
    e('s_barrier')
    e('s_nop 7')
    for m in range(2):
        if m == 1:
            e(f's_cmp_eq_u32 s{sWV}, 3'); e('s_cbranch_scc1 L_skip_h')
        for qt in range(4):
            ob = 200 + (qt & 1) * 4
            for t in range(2):
                src = 128 + ((2*m + t) * 4 + qt) * 4
                e(f'v_cvt_pk_bf16_f32 v{ob+2*t}, v{src}, v{src+1}'); e(f'v_cvt_pk_bf16_f32 v{ob+2*t+1}, v{src+2}, v{src+3}')
            for t in range(4): e(f'v_pk_max_i16 v{ob+t}, v{ob+t}, 0')
            if m == 0 and qt == 0: e(f'v_add_u32 v208, s{sWV8K}, v{vLIN}')
            e(f'ds_write_b128 v208, {R("v", ob)} offset:{(m*4+qt)*1024}')
    e('L_skip_h:')
    e(f'v_and_b32 v209, 60, v{vLANE}'); e(f's_lshl_b32 s{sT1}, s{sWV}, 6'); e(f'v_add_u32 v209, s{sT1}, v209')
    e(f'ds_write_b32 v209, v228 offset:{LDS_RSTD}')
    e(f's_lshl_b32 s{sT2}, s{sQB}, 8'); e(f's_add_u32 s{sT2}, s{sT2}, {WS_RSTD}')
    e(f'buffer_store_dword v228, v209, {srd(S_WS)}, s{sT2} offen', 'st')
    e(f'v_lshrrev_b32 v210, 4, v{vLANE}'); e(f'v_and_b32 v211, 15, v{vLANE}')
    e('v_xor_b32 v212, v210, v211'); e('v_lshlrev_b32 v212, 4, v212')
    e('v_lshl_add_u32 v213, v211, 8, v212')
    e('v_lshl_add_u32 v214, v210, 8, v212')
    for i in range(4):
        e(f'v_xor_b32 v{vK[i]}, {i*64}, v213'); e(f'v_xor_b32 v{vOK[i]}, {i*64}, v214')
    e(f's_sub_u32 s{sT1}, {LDS_V[0]}, s{sRING}')
    e(f'v_lshlrev_b32 v215, 9, v210'); e(f'v_add_u32 v215, s{sT1}, v215')
    for i in range(4): e(f'v_add_u32 v{vV[i]}, v{vA[i]}, v215')
    e(f'v_bfe_u32 v216, v{vLANE}, 3, 2'); e(f'v_lshrrev_b32 v217, 5, v{vLANE}')
    e(f'v_and_b32 v218, 7, v{vLANE}'); e('v_and_b32 v219, 2, v216'); e('v_xor_b32 v218, v218, v219'); e('v_lshlrev_b32 v218, 4, v218')
    e('v_lshl_add_u32 v218, v217, 7, v218'); e(f'v_lshl_add_u32 v{vOV[0]}, v216, 8, v218')
    e(f'v_xor_b32 v{vOV[1]}, 64, v{vOV[0]}')
    def kv_dma(which, slot, j, tag):
        vo = vOK[j & 3] if which == 'k' else vOV[j & 1]
        off = f' offset:{1024*(j & 3)}' if j & 3 else ''
        return (f'buffer_load_dwordx4 v{vo}, {srd(S_K if which == "k" else S_V)}, s{sT1} offen{off} lds', tag)
    def kv_setup(which, slot, hi, delta):
        l = (LDS_K if which == 'k' else LDS_V)[slot] + hi * 4096
        return [f's_add_u32 m0, s{sWV8K}, {l}', f's_add_u32 s{sT1}, s{sKVO}, {delta + hi*4096}']
    def kv_dma_now(which, slot, delta, tag):
        for hi in range(2):
            for x in kv_setup(which, slot, hi, delta): e(x)
            for j in range(4):
                t = kv_dma(which, slot, hi*4 + j, tag); e(t[0], t[1])
    e(f's_mov_b32 s{sKVO}, s{sKV0}')
    kv_dma_now('k', 0, 0, 'k0')
    e('s_waitcnt lgkmcnt(0)'); e('s_barrier')
    e(f'v_lshlrev_b32 v209, 2, v211')
    for qt in range(4): e(f'ds_read_b32 v{vRS[qt]}, v209 offset:{LDS_RSTD + qt*64}')
    def bread2(ks): return [f'ds_read_b128 {R("a", aBF[ks & 1] + qt*4)}, v{vLIN} offset:{(ks*4+qt)*1024}' for qt in range(4)]
    for x in bread2(0): e(x)
    e('s_waitcnt lgkmcnt(4)')
    for qt in range(4): e(f'v_mul_f32 v{vRS[qt]}, {f2u(CSCALE):#x}, v{vRS[qt]}')
    for s in range(4):
        for qt in range(4):
            ob = 200 + (qt & 1) * 4
            for t in range(2):
                src = ((2*s + t) * 4 + qt) * 4
                for r in range(4): e(f'v_mul_f32 v{src+r}, v{vRS[qt]}, v{src+r}')
            for t in range(2):
                src = ((2*s + t) * 4 + qt) * 4
                e(f'v_cvt_pk_bf16_f32 v{ob+2*t}, v{src}, v{src+1}'); e(f'v_cvt_pk_bf16_f32 v{ob+2*t+1}, v{src+2}, v{src+3}')
            e('s_nop 0')
            e(f'v_permlane32_swap_b32 v{ob}, v{ob+2}'); e(f'v_permlane32_swap_b32 v{ob+1}, v{ob+3}')
            e('s_nop 0')
            e(f'v_permlane16_swap_b32 v{ob}, v{ob+2}'); e(f'v_permlane16_swap_b32 v{ob+1}, v{ob+3}')
            for t in range(4): e(f'v_accvgpr_write_b32 a{aQ + (qt*4+s)*4 + t}, v{ob+t}')
    stamp()
    def breads_f2(i):
        ks, p = divmod(i - 48, 2)
        if ks + 1 >= 7: return []
        b = bread2(ks + 1)
        return b[:2] if p == 0 else b[2:]
    gemm_units(units, 48, 62, breads_f2)
    stamp()
    A.wait_vm(['k0'])
    e('s_barrier')
    kv_dma_now('k', 1, 32768, 'k1'); kv_dma_now('v', 0, 0, 'v0')
    wun = []
    for ks in range(16):
        for h in range(2):
            wun.append(dict(kind='wo', k0=32*ks, colb=128*h, acc=64*h, czero=ks == 0, bbuf=ks & 1, ks=ks))
    for i, u in enumerate(wun): u['slot'] = i % 6; u['tag'] = f'w{i}'
    for i in range(2): emit_unit_dma_now(wun[i])
    def store_partial(base):
        e(f's_add_u32 s{sT2}, s{sPART}, {base}')
        for p in range(4):
            for qt in range(4):
                ob = 200 + ((p*4+qt) & 3) * 4
                for t in range(2):
                    src = ((2*p + t) * 4 + qt) * 4
                    e(f'v_cvt_pk_bf16_f32 v{ob+2*t}, v{src}, v{src+1}'); e(f'v_cvt_pk_bf16_f32 v{ob+2*t+1}, v{src+2}, v{src+3}')
                e(f'buffer_store_dwordx4 {R("v", ob)}, v{vLIN}, {srd(S_WS)}, s{sT2} offen offset:{qt*1024}', 'st')
            if p < 3: e(f's_add_u32 s{sT2}, s{sT2}, 4096')
    store_partial(WS_Y)
    def kreads(slot, kt, buf): return [f'ds_read_b128 {R("a", aKF[buf] + s*4)}, v{vK[s]} offset:{LDS_K[slot] + kt*4096}' for s in range(4)]
    def qk(kbuf, sbuf, czero=False):
        out = []
        for qt in range(4):
            for s in range(4):
                c = None if s else ('0' if czero else R('v', vNEG + qt*4))
                out.append(mfma('v', vS + sbuf*16 + qt*4, 'a', aKF[kbuf] + s*4, 'a', aQ + (qt*4+s)*4, c))
        return out
    def finish_max(mx):
        for qt in range(4): e(f'v_mov_b32 v{220+qt}, v{mx[qt]}')
        e('s_nop 0')
        for qt in range(4): e(f'v_permlane32_swap_b32 v{mx[qt]}, v{220+qt}')
        for qt in range(4): e(f'v_max_f32 v{mx[qt]}, v{mx[qt]}, v{220+qt}')
        for qt in range(4): e(f'v_mov_b32 v{220+qt}, v{mx[qt]}')
        e('s_nop 0')
        for qt in range(4): e(f'v_permlane16_swap_b32 v{mx[qt]}, v{220+qt}')
        for qt in range(4): e(f'v_max_f32 v{mx[qt]}, v{mx[qt]}, v{220+qt}')
        for qt in range(4):
            for r in range(4): e(f'v_sub_f32 v{vNEG + qt*4 + r}, 0, v{mx[qt]}')
    mx = [216, 217, 218, 219]
    for x in kreads(0, 0, 0) + kreads(0, 1, 1): e(x)
    e('s_waitcnt lgkmcnt(4)')
    for x in qk(0, 0, True): e(x)
    e('s_waitcnt lgkmcnt(0)')
    for x in qk(1, 1, True): e(x)
    e('s_nop 7')
    for qt in range(4):
        a, b = vS + qt*4, vS + 16 + qt*4
        e(f'v_max3_f32 v{mx[qt]}, v{a}, v{a+1}, v{a+2}'); e(f'v_max3_f32 v{mx[qt]}, v{mx[qt]}, v{a+3}, v{b}')
        e(f'v_max3_f32 v{mx[qt]}, v{mx[qt]}, v{b+1}, v{b+2}'); e(f'v_max_f32 v{mx[qt]}, v{mx[qt]}, v{b+3}')
    if OPT['force_redo']:
        for qt in range(4): e(f'v_add_f32 v{mx[qt]}, {f2u(-64.0):#x}, v{mx[qt]}')
    finish_max(mx)
    stamp()
    e('L_attn:')
    for qt in range(4): e(f'v_mov_b32 v{vL[qt]}, 0')
    def vreads(slot, dt, buf):
        out = []
        for ks in range(4):
            for h in range(2):
                out.append(f'ds_read_b64_tr_b16 {R("a", aVF[buf] + ks*4 + h*2, 2)}, v{vV[dt & 3]} offset:{slot*32768 + ks*8192 + h*4096 + (dt >> 2)*512}')
        return out
    def pv(pbuf, dt):
        out = []
        for qt in range(4):
            for ks in range(4):
                out.append(mfma('a', aO + (dt*4+qt)*4, 'a', aVF[dt & 1] + ks*4, 'v', pbuf*64 + (ks*4+qt)*4))
        return out
    def sm_ops(pbuf, kt):
        sb = vS + (kt & 1) * 16
        ex = [f'v_exp_f32 v{sb+i}, v{sb+i}' for i in range(16)]
        ad = [f'v_add_f32 v{vL[i >> 2]}, v{vL[i >> 2]}, v{sb+i}' for i in range(16)]
        cv = [f'v_cvt_pk_bf16_f32 v{pbuf*64 + ((kt >> 1)*4 + (m >> 1))*4 + (kt & 1)*2 + (m & 1)}, v{sb+2*m}, v{sb+2*m+1}' for m in range(8)]
        return ex, ad, cv
    carry = []
    def dense_sm(plan, g0, sm):
        ex, ad, cv = sm
        for i in range(16):
            p = plan.setdefault(g0 + i, [])
            if i == 0:
                p.extend(carry); carry.clear()
            else:
                p.append(ad[i-1])
                if i % 2 == 0: p.append(cv[i//2 - 1])
            p.append(ex[i])
        carry.extend([cv[7], ad[15]])
    def steady_sm(plan, sm):
        ex, ad, cv = sm
        avail = [(0, x) for x in carry]; carry.clear()
        for i in range(16):
            avail.append((2*i + 2, ad[i]))
            if i & 1: avail.append((2*i + 2, cv[i >> 1]))
        for g in range(0, 32, 2):
            cap = 1 if g < 24 else 3
            p = plan.setdefault(g, [])
            for _ in range(cap):
                cand = [k for k, (t, x) in enumerate(avail) if t <= g]
                if not cand: break
                k = cand[0]
                p.append(avail.pop(k)[1])
            plan.setdefault(g + 1, []).append(ex[g >> 1])
        rest = [x for t, x in avail]
        rest.sort(key=lambda x: 0 if 'cvt' in x else 1)
        carry.extend(rest)
    def dma_plan(plan, per, b, do_k=True, do_v=True):
        jobs = {0: ('k', (b+1) & 1, 0, 2*32768), 1: ('k', (b+1) & 1, 1, 2*32768), 2: ('v', b & 1, 0, 32768), 3: ('v', b & 1, 1, 32768)}
        if per not in jobs: return
        w, slot, hi, delta = jobs[per]
        if (w == 'k' and not do_k) or (w == 'v' and not do_v): return
        su = kv_setup(w, slot, hi, delta)
        plan[21].insert(0, su[0]); plan[23].insert(0, su[1])
        plan[24] = [kv_dma(w, slot, hi*4 + j, 'kv') for j in range(4)] + plan[24]
    def lds_plan(plan, kr, vr):
        for g, x in zip((0, 2, 4, 6), kr): plan.setdefault(g, []).insert(0, x)
        for g, x in zip(range(8, 24, 2), vr): plan.setdefault(g, []).insert(0, x)
        plan.setdefault(15, []).insert(0, 's_waitcnt lgkmcnt(4)')
        plan.setdefault(31, []).insert(0, 's_waitcnt lgkmcnt(0)')
    for x in kreads(0, 0, 0): e(x)
    e('s_waitcnt lgkmcnt(0)')
    for j in range(7):
        plan = {}
        if j: dense_sm(plan, 0, sm_ops(0, j - 1))
        for g, x in zip((0, 2, 4, 6), kreads(0, j + 1, (j + 1) & 1)): plan.setdefault(g, []).insert(0, x)
        plan.setdefault(15, []).insert(0, 's_waitcnt lgkmcnt(0)')
        emit_gaps(qk(j & 1, j & 1), plan)
    def segment(b):
        e('s_waitcnt vmcnt(0)'); e('s_barrier')
        for per in range(8):
            plan = {}
            if per == 0:
                if b < 0:
                    first = qk(1, 1)
                    dense_sm(plan, 0, sm_ops(0, 6)); dense_sm(plan, 16, sm_ops(0, 7))
                else:
                    first = pv(b & 1, 7)
                    steady_sm(plan, sm_ops((b+1) & 1, 7))
            else:
                first = pv((b+1) & 1, per - 1)
                steady_sm(plan, sm_ops(b & 1, per - 1))
            lds_plan(plan, kreads(b & 1, per, 0), vreads((b+1) & 1, per, per & 1))
            dma_plan(plan, per, b)
            if per == 7: plan[29].insert(0, f's_add_u32 s{sKVO}, s{sKVO}, 32768')
            if per == 7 and b == 1:
                plan[25].insert(0, f's_sub_u32 s{sIT}, s{sIT}, 1')
            emit_gaps(first + qk(0, per & 1), plan)
    segment(-1)
    stamp()
    e(f's_mov_b32 s{sIT}, 7')
    A.raw('.p2align 6')
    e('L_loop:')
    mk = A.mark()
    c0 = list(carry)
    segment(0); segment(1)
    assert carry == c0, (carry, c0)
    e(f's_cmp_lg_u32 s{sIT}, 0'); e('s_cbranch_scc1 L_loop')
    A.repeat_trace(mk)
    stamp()
    e('s_waitcnt vmcnt(0)'); e('s_barrier')
    for i in (2, 3): emit_unit_dma_now(wun[i])
    plan = {}
    dense_sm(plan, 0, sm_ops(1, 7))
    for g, x in zip(range(0, 8), vreads(1, 0, 0)): plan.setdefault(g, []).insert(0, x)
    plan[15].append('s_waitcnt lgkmcnt(0)')
    plan[15].extend(carry); carry.clear()
    emit_gaps(pv(0, 7), plan)
    for dt in range(8):
        plan = {}
        if dt < 7:
            for g, x in zip(range(0, 8), vreads(1, dt + 1, (dt + 1) & 1)): plan.setdefault(g, []).insert(0, x)
            plan.setdefault(15, []).append('s_waitcnt lgkmcnt(0)')
        emit_gaps(pv(1, dt), plan)
    stamp()
    for qt in range(4): e(f'v_mov_b32 v{220+qt}, v{vL[qt]}')
    e('s_nop 0')
    for qt in range(4): e(f'v_permlane32_swap_b32 v{vL[qt]}, v{220+qt}')
    for qt in range(4): e(f'v_add_f32 v{vL[qt]}, v{vL[qt]}, v{220+qt}')
    for qt in range(4): e(f'v_mov_b32 v{220+qt}, v{vL[qt]}')
    e('s_nop 0')
    for qt in range(4): e(f'v_permlane16_swap_b32 v{vL[qt]}, v{220+qt}')
    for qt in range(4): e(f'v_add_f32 v{vL[qt]}, v{vL[qt]}, v{220+qt}')
    e(f'v_mov_b32 v220, {f2u(2.0**30):#x}')
    e('s_mov_b64 s[60:61], 0')
    for qt in range(4):
        e(f'v_cmp_nlt_f32 vcc, v{vL[qt]}, v220'); e('s_nop 0'); e('s_or_b64 s[60:61], s[60:61], vcc')
    e('s_cmp_lg_u64 s[60:61], 0'); e(f's_cselect_b32 s{sT1}, 1, 0')
    e(f'v_mov_b32 v220, s{sT1}'); e(f's_lshl_b32 s{sT2}, s{sWV}, 2'); e(f'v_mov_b32 v221, s{sT2}')
    e('ds_write_b32 v221, v220')
    e('s_waitcnt lgkmcnt(0)'); e('s_barrier')
    e('v_mov_b32 v221, 0'); e('ds_read_b128 v[216:219], v221')
    for qt in range(4): e(f'v_rcp_f32 v{vL[qt]}, v{vL[qt]}')
    e('s_waitcnt lgkmcnt(0)')
    e('v_or_b32 v216, v216, v217'); e('v_or3_b32 v216, v216, v218, v219'); e('s_nop 0')
    e(f'v_readfirstlane_b32 s{sT1}, v216')
    e('s_barrier')
    e(f's_andn2_b32 s{sT1}, s{sT1}, s{sREDO}')
    e(f's_cmp_lg_u32 s{sT1}, 0'); e('s_cbranch_scc1 L_redo')
    for i in (4, 5): emit_unit_dma_now(wun[i])
    e(f's_lshl_b32 s{sT1}, s{sWV}, 14'); e(f'v_add_u32 v208, s{sT1}, v{vLIN}')
    for s in range(4):
        for qt in range(4):
            tb = 0 + ((s*4+qt) & 1) * 8
            ob = 200 + (qt & 1) * 4
            for t in range(2):
                for r in range(4): e(f'v_accvgpr_read_b32 v{tb + t*4 + r}, a{aO + ((2*s+t)*4 + qt)*4 + r}')
            for r in range(8): e(f'v_mul_f32 v{tb+r}, v{vL[qt]}, v{tb+r}')
            for r in range(4): e(f'v_cvt_pk_bf16_f32 v{ob+r}, v{tb+2*r}, v{tb+2*r+1}')
            e(f'ds_write_b128 v208, {R("v", ob)} offset:{(s*4+qt)*1024}')
    for x in unit_reads(wun[0], 0): e(x)
    e('s_waitcnt lgkmcnt(0)'); e('s_barrier')
    stamp()
    for x in bread2(0): e(x)
    def breads_o(i):
        ks, p = divmod(i, 2)
        if ks + 1 >= 16: return []
        b = bread2(ks + 1)
        return b[:2] if p == 0 else b[2:]
    gemm_units(wun, 0, 32, breads_o)
    stamp()
    e('s_nop 7')
    store_partial(0)
    if OPT['stamps']:
        e('s_waitcnt vmcnt(0)')
        stamp()
        e(f'v_lshlrev_b32 v1, 2, v{vLANE}'); e(f's_lshl_b32 s{sT1}, s2, 10'); e(f's_lshl_b32 s{sT2}, s{sWV}, 8'); e(f's_add_u32 s{sT1}, s{sT1}, s{sT2}')
        e(f's_add_u32 s{sT1}, s{sT1}, {WS_STAMP}')
        e('s_memrealtime s[90:91]'); e('s_waitcnt lgkmcnt(0)'); e(f'v_writelane_b32 v{vSTAMP}, s90, 63')
        e(f'buffer_store_dword v{vSTAMP}, v1, {srd(S_WS)}, s{sT1} offen')
    e('L_main_end:')
    e('s_endpgm')
    t0 = A.mark()
    e('L_redo:')
    e(f's_mov_b32 s{sREDO}, 1')
    e(f's_mov_b32 s{sKVO}, s{sKV0}')
    e(f's_mov_b32 s{sCNT}, 16')
    for qt in range(4): e(f'v_mov_b32 v{mx[qt]}, 0xff800000')
    e('L_redo_blk:')
    kv_dma_now('k', 0, 0, 'k0')
    e('s_waitcnt vmcnt(0)'); e('s_barrier')
    for kt in range(8):
        for x in kreads(0, kt, 0): e(x)
        e('s_waitcnt lgkmcnt(0)')
        for x in qk(0, 0, True): e(x)
        e('s_nop 7')
        for qt in range(4):
            a = vS + qt*4
            e(f'v_max3_f32 v{mx[qt]}, v{mx[qt]}, v{a}, v{a+1}'); e(f'v_max3_f32 v{mx[qt]}, v{mx[qt]}, v{a+2}, v{a+3}')
    e('s_barrier')
    e(f's_add_u32 s{sKVO}, s{sKVO}, 32768')
    e(f's_sub_u32 s{sCNT}, s{sCNT}, 1'); e(f's_cmp_lg_u32 s{sCNT}, 0'); e('s_cbranch_scc1 L_redo_blk')
    finish_max(mx)
    for i in range(128): e(f'v_accvgpr_write_b32 a{aO+i}, 0')
    e(f's_mov_b32 s{sKVO}, s{sKV0}')
    kv_dma_now('k', 0, 0, 'k0'); kv_dma_now('k', 1, 32768, 'k1'); kv_dma_now('v', 0, 0, 'v0')
    e('s_waitcnt vmcnt(0)'); e('s_barrier')
    e('s_branch L_attn')

def gen_comb():
    A.raw(f'.globl comb_kernel\n.p2align 8\n.type comb_kernel,@function')
    e('comb_kernel:')
    e('s_cmp_ge_u32 s2, 512'); e('s_cbranch_scc1 L_comb_end')
    e('s_load_dwordx2 s[4:5], s[0:1], 0'); e('s_load_dwordx2 s[6:7], s[0:1], 64'); e('s_load_dwordx2 s[20:21], s[0:1], 80')
    e('v_lshlrev_b32 v1, 4, v0'); e('s_lshl_b32 s3, s2, 12')
    e('v_and_b32 v2, 15, v0'); e('v_lshrrev_b32 v3, 6, v0'); e('v_lshl_add_u32 v2, v3, 4, v2')
    e('v_bfe_u32 v3, v0, 4, 2')
    e('v_lshlrev_b32 v4, 10, v2'); e('v_lshl_add_u32 v4, v3, 4, v4')
    e('v_lshlrev_b32 v5, 2, v2')
    e('s_lshr_b32 s22, s2, 4'); e('s_and_b32 s23, s2, 15'); e('s_lshl_b32 s23, s23, 6')
    e('s_lshl_b32 s24, s22, 16'); e('s_add_u32 s24, s24, s23')
    e('s_lshl_b32 s25, s22, 8'); e(f's_add_u32 s25, s25, {WS_RSTD}')
    e('s_waitcnt lgkmcnt(0)')
    mk_srd(16, 20, 64 << 20); mk_srd(8, 4, 2097152); mk_srd(12, 6, 2097152)
    for i in range(16):
        e(f'buffer_load_dwordx4 {R("v", 16 + i*4)}, v1, s[16:19], s3 offen', f'p{i}')
        if i < 15: e('s_add_u32 s3, s3, 0x200000')
    e('buffer_load_dword v6, v5, s[16:19], s25 offen', 'rs')
    e('buffer_load_dwordx4 v[8:11], v4, s[8:11], s24 offen', 'x')
    for ty in range(2):
        ac = 80 + ty * 8
        for g in range(8):
            i = ty * 8 + g
            A.wait_vm([f'p{i}'])
            for r in range(4):
                src = 16 + i*4 + r
                if g == 0:
                    e(f'v_lshlrev_b32 v{ac+2*r}, 16, v{src}'); e(f'v_and_b32 v{ac+2*r+1}, 0xffff0000, v{src}')
                else:
                    t = 96 + (r & 1) * 2
                    e(f'v_lshlrev_b32 v{t}, 16, v{src}'); e(f'v_and_b32 v{t+1}, 0xffff0000, v{src}')
                    e(f'v_pk_add_f32 v[{ac+2*r}:{ac+2*r+1}], v[{ac+2*r}:{ac+2*r+1}], v[{t}:{t+1}]')
    e('s_waitcnt vmcnt(0)')
    def rnd(lo, n):
        for r in range(0, n, 2):
            e(f'v_cvt_pk_bf16_f32 v96, v{lo+r}, v{lo+r+1}')
            e(f'v_lshlrev_b32 v{lo+r}, 16, v96'); e(f'v_and_b32 v{lo+r+1}, 0xffff0000, v96')
    for r in range(8): e(f'v_mul_f32 v{88+r}, v6, v{88+r}')
    rnd(80, 16)
    for r in range(8): e(f'v_mul_f32 v{16+r}, {f2u(-1.4426950408889634):#x}, v{88+r}')
    for r in range(8): e(f'v_exp_f32 v{16+r}, v{16+r}')
    for r in range(8): e(f'v_add_f32 v{16+r}, 1.0, v{16+r}')
    for r in range(8): e(f'v_rcp_f32 v{16+r}, v{16+r}')
    for r in range(8): e(f'v_mul_f32 v{88+r}, v{88+r}, v{16+r}')
    rnd(88, 8)
    for r in range(8): e(f'v_mul_f32 v{80+r}, v{80+r}, v{88+r}')
    for r in range(4): e(f'v_cvt_pk_bf16_f32 v{24+r}, v{80+2*r}, v{80+2*r+1}')
    e('s_nop 0')
    e('v_permlane32_swap_b32 v24, v26'); e('v_permlane32_swap_b32 v25, v27')
    e('s_nop 0')
    e('v_permlane16_swap_b32 v24, v26'); e('v_permlane16_swap_b32 v25, v27')
    for r in range(4):
        e(f'v_lshlrev_b32 v32, 16, v{24+r}'); e(f'v_and_b32 v33, 0xffff0000, v{24+r}')
        e(f'v_lshlrev_b32 v34, 16, v{8+r}'); e(f'v_and_b32 v35, 0xffff0000, v{8+r}')
        e('v_pk_add_f32 v[32:33], v[32:33], v[34:35]')
        e(f'v_cvt_pk_bf16_f32 v{28+r}, v32, v33')
    e('buffer_store_dwordx4 v[28:31], v4, s[12:15], s24 offen')
    e('L_comb_end:')
    e('s_endpgm')

def desc(name, vgpr, acc, sgpr):
    return f""".p2align 6
.amdhsa_kernel {name}
  .amdhsa_next_free_vgpr {vgpr}
  .amdhsa_next_free_sgpr {sgpr}
  .amdhsa_accum_offset {acc}
  .amdhsa_group_segment_fixed_size 0
  .amdhsa_kernarg_size 88
  .amdhsa_user_sgpr_count 2
  .amdhsa_user_sgpr_kernarg_segment_ptr 1
  .amdhsa_system_sgpr_workgroup_id_x 1
  .amdhsa_float_denorm_mode_32 3
.end_amdhsa_kernel
"""

HEAD = """; Fused LayerNorm + Q projection + ReLU FFN + GQA attention + output projection, then a combine kernel.
; @launch kernel=main_kernel grid=(256,1,1) block=(256,1,1) lds=163840
; @launch kernel=comb_kernel grid=(512,1,1) block=(256,1,1) lds=0
.amdgcn_target "amdgcn-amd-amdhsa--gfx950"
"""
gen_main()
n1 = len(A.trace)
errs = check(A.trace)
A.trace = []; A.vm = []
gen_comb()
errs += check(A.trace)
out = HEAD + A.text() + '.section .rodata,"a"\n' + desc('main_kernel', 512, 256, 96) + desc('comb_kernel', 104, 104, 32)
open(sys.argv[1], 'w').write(out)
print('errors:', len(errs), 'lines:', out.count('\n'))
```

```python
import re

REG_RE = re.compile(r'^(-|abs\()?([vas])(?:\[(\d+):(\d+)\]|(\d+))\)?$')

def parse_reg(tok):
    tok = tok.strip()
    m = REG_RE.match(tok)
    if m:
        f = m.group(2)
        if m.group(3) is not None:
            return [(f, i) for i in range(int(m.group(3)), int(m.group(4)) + 1)]
        return [(f, int(m.group(5)))]
    if tok in ('vcc', 'exec', 'm0', 'scc'):
        return [(tok, 0)]
    return []

TRANS = ('v_exp_f32', 'v_log_f32', 'v_rcp_f32', 'v_rsq_f32', 'v_sqrt_f32')

class Ins:
    __slots__ = ('text', 'op', 'kind', 'rd', 'wr', 'srcc', 'srcab', 'tag', 'nops', 'dpp', 'data')
    def __init__(self, text, tag=None):
        self.text = text
        self.tag = tag
        t = text.split(';')[0].strip()
        parts = t.split(None, 1)
        self.op = op = parts[0]
        rest = parts[1] if len(parts) > 1 else ''
        ops = [o.strip() for o in rest.split(',')] if rest else []
        if 'quad_perm' in rest or 'op_sel' in rest or 'neg_lo' in rest:
            cut = min(x for x in (rest.find('quad_perm'), rest.find('op_sel'), rest.find('neg_lo')) if x >= 0)
            ops = [o.strip() for o in rest[:cut].split(',')]
        toks = []
        for o in ops:
            toks.append(o.split()[0] if o.split() else '')
        self.dpp = ('quad_perm' in rest or 'row_' in rest)
        regs = [parse_reg(x) for x in toks]
        self.rd, self.wr, self.srcc, self.srcab, self.data = set(), set(), set(), set(), set()
        self.nops = 1
        if op.endswith(':') or op.startswith('.'):
            self.kind = 'label'; self.nops = 0
        elif op.startswith('v_mfma'):
            self.kind = 'mfma16' if '16x16x32' in op else 'mfma32'
            self.wr = set(regs[0]); self.srcab = set(regs[1]) | set(regs[2]); self.srcc = set(regs[3])
            self.rd = self.srcab | self.srcc
        elif op.startswith('ds_read'):
            self.kind = 'ds_read'; self.wr = set(regs[0]); self.rd = set(regs[1])
        elif op.startswith('ds_write'):
            self.kind = 'ds_write'
            for r in regs: self.rd |= set(r)
        elif op.startswith('buffer_load') or op.startswith('global_load'):
            if re.search(r'\blds\b', rest) or 'load_lds' in op:
                self.kind = 'dma'
                for r in regs: self.rd |= set(r)
                self.rd.add(('m0', 0))
            else:
                self.kind = 'vload'; self.wr = set(regs[0])
                for r in regs[1:]: self.rd |= set(r)
        elif op.startswith('buffer_store') or op.startswith('global_store') or op.startswith('buffer_atomic'):
            self.kind = 'vstore'
            for r in regs: self.rd |= set(r)
            self.data = set(regs[0]) if op.startswith('buffer') else set(regs[1])
        elif op == 's_waitcnt':
            self.kind = 'wait'
        elif op == 's_nop':
            self.kind = 'nop'; self.nops = int(toks[0]) + 1
        elif op == 's_barrier':
            self.kind = 'barrier'
        elif op.startswith('s_load') or op in ('s_memtime', 's_memrealtime'):
            self.kind = 'smem'; self.wr = set(regs[0])
            for r in regs[1:]: self.rd |= set(r)
        elif op.startswith('s_'):
            self.kind = 'salu'
            if op.startswith('s_cmp') or op.startswith('s_cbranch') or op in ('s_branch', 's_endpgm', 's_setprio', 's_sleep'):
                for r in regs: self.rd |= set(r)
            else:
                if regs: self.wr = set(regs[0])
                for r in regs[1:]: self.rd |= set(r)
        elif op.startswith('v_'):
            self.kind = 'trans' if op.replace('_e32', '').replace('_e64', '') in TRANS else 'valu'
            if op.startswith('v_dot'): self.kind = 'dot'
            self.wr = set(regs[0])
            for r in regs[1:]: self.rd |= set(r)
            if op.startswith('v_permlane') and 'swap' in op:
                self.wr |= set(regs[1]); self.rd |= set(regs[0]); self.kind = 'perm'
            if op.startswith('v_fmac') or op.startswith('v_dot2c') or op.startswith('v_writelane'):
                self.rd |= set(regs[0])
            if self.dpp: self.rd |= set(regs[0])
        else:
            raise ValueError('unknown instr: ' + text)

VALUISH = ('valu', 'trans', 'dot', 'perm')

class Asm:
    def __init__(self):
        self.lines = []
        self.trace = []
        self.vm = []
        self.trace_on = True
        self.lg = []
        self.auto = True
    def raw(self, text):
        self.lines.append(text)
    def lg_need(self, regs):
        last = -1
        for k, d in enumerate(self.lg):
            if d & regs: last = k
        if last < 0: return None
        return min(len(self.lg) - 1 - last, 15)
    def e(self, text, tag=None):
        i = Ins(text, tag)
        if self.auto and i.kind not in ('label', 'wait'):
            n = self.lg_need(i.rd | i.wr)
            if n is not None: self.e(f's_waitcnt lgkmcnt({n})')
        if i.kind in ('ds_read', 'ds_write'): self.lg.append(set(i.wr))
        if i.kind == 'wait':
            m = re.search(r'lgkmcnt\((\d+)\)', text)
            if m:
                n = int(m.group(1))
                if n < len(self.lg): self.lg = self.lg[len(self.lg) - n:] if n else []
        self.lines.append(('' if i.kind == 'label' else '  ') + text)
        if self.trace_on: self.trace.append(i)
        if i.kind in ('dma', 'vload', 'vstore'):
            self.vm.append(tag)
        if i.kind == 'wait':
            m = re.search(r'vmcnt\((\d+)\)', text)
            if m:
                n = int(m.group(1))
                if n < len(self.vm): self.vm = self.vm[len(self.vm) - n:] if n else []
        return i
    def vm_count_for(self, tags):
        last = -1
        for k, t in enumerate(self.vm):
            if t in tags: last = k
        if last < 0: return None
        return len(self.vm) - 1 - last
    def wait_vm_text(self, tags):
        n = self.vm_count_for(tags)
        if n is None: return None
        assert n <= 63, n
        return f's_waitcnt vmcnt({n})'
    def wait_vm(self, tags):
        t = self.wait_vm_text(tags)
        if t: self.e(t)
    def mark(self):
        return len(self.trace)
    def repeat_trace(self, start):
        self.trace.extend(self.trace[start:])
    def text(self):
        return '\n'.join(self.lines) + '\n'

def check(trace, verbose=True):
    errs = []
    n = len(trace)
    WIN = 24
    for i, c in enumerate(trace):
        if c.kind in ('label', 'nop', 'wait', 'barrier'): continue
        dist = 0
        j = i - 1
        while j >= 0 and dist < WIN:
            p = trace[j]
            need = 0; why = ''
            crw = c.rd | c.wr
            if p.kind in ('mfma16', 'mfma32'):
                four = p.kind == 'mfma16'
                if c.kind in ('mfma16', 'mfma32'):
                    if p.wr & c.srcab: need, why = (8 if four else 12), 'mfmaD->AB'
                    elif p.wr & c.srcc and (p.wr != c.srcc or p.kind != c.kind): need, why = (6 if four else 10), 'mfmaD->C overlap'
                elif c.kind in VALUISH:
                    if p.wr & crw: need, why = (8 if four else 12), 'mfmaD->valu'
                    elif p.srcc & c.wr: need, why = (3 if four else 7), 'mfmaC WAR'
                elif c.kind in ('ds_read', 'ds_write', 'vload', 'vstore', 'dma'):
                    if p.wr & crw: need, why = (8 if four else 12), 'mfmaD->mem'
            elif p.kind in VALUISH:
                vw = {r for r in p.wr if r[0] in 'va' and len(r[0]) == 1}
                sw = {r for r in p.wr if r[0] in ('s', 'vcc')}
                if c.kind in ('mfma16', 'mfma32') and vw & c.rd: need, why = (3 if p.kind == 'dot' else 2), 'valu->mfma'
                if p.kind == 'trans' and c.kind in ('valu', 'dot', 'perm') and vw & c.rd: need, why = max(need, 1), 'trans->valu'
                if p.kind == 'dot' and vw & crw and not (c.op == p.op and not (vw & (c.rd - set(parse_reg(c.text.split(',')[-1].split()[0]))))): need, why = max(need, 3), 'dot->other'
                if c.kind == 'perm' and vw & c.rd: need, why = max(need, 2), 'valu->permlane'
                if c.dpp and vw & c.rd: need, why = max(need, 2), 'valu->dpp'
                if c.op.startswith('v_readfirstlane') or c.op.startswith('v_readlane'):
                    if vw & c.rd: need, why = max(need, 1), 'valu->readlane'
                if sw & c.rd:
                    if c.kind in ('vload', 'vstore', 'dma'): need, why = max(need, 5), 'valu sgpr->vmem'
                    elif c.kind in VALUISH: need, why = max(need, 2), 'valu sgpr->valu'
            elif p.kind == 'salu':
                if ('m0', 0) in p.wr and (c.kind == 'dma' or c.op.startswith('v_writelane') and ('m0', 0) in c.rd): need, why = 1, 'm0->dma'
            elif p.kind == 'vstore':
                if len(p.data) > 2 and p.data & c.wr: need, why = (2 if c.kind in VALUISH else 1), 'store data WAR'
            if need > dist:
                errs.append(f'HAZARD {why}: need {need} have {dist}: [{p.text}] -> [{c.text}] @{i}')
            dist += p.nops
            j -= 1
    lg = []
    vmq = []
    smem_out = False
    for i, c in enumerate(trace):
        if c.kind == 'wait':
            m = re.search(r'lgkmcnt\((\d+)\)', c.text)
            if m:
                k = int(m.group(1))
                if smem_out and k > 0:
                    errs.append(f'counted lgkmcnt with smem outstanding @{i}')
                lg = lg[len(lg) - k:] if 0 < k < len(lg) else ([] if k == 0 else lg)
                if k == 0: smem_out = False
            m = re.search(r'vmcnt\((\d+)\)', c.text)
            if m:
                k = int(m.group(1))
                vmq = vmq[len(vmq) - k:] if 0 < k < len(vmq) else ([] if k == 0 else vmq)
            continue
        use = c.rd | c.wr
        for d, t in lg:
            if d & use: errs.append(f'LGKM not waited: [{t}] -> [{c.text}] @{i}')
        for d, t in vmq:
            if d & use: errs.append(f'VM not waited: [{t}] -> [{c.text}] @{i}')
        if c.kind == 'barrier':
            for d, t in lg:
                if t.startswith('ds_write'): errs.append(f'barrier with ds_write outstanding [{t}] @{i}')
        if c.kind in ('ds_read', 'ds_write'):
            lg.append((set(c.wr), c.text))
        elif c.kind == 'smem':
            lg.append((set(c.wr), c.text)); smem_out = True
        elif c.kind in ('vload', 'vstore', 'dma'):
            vmq.append((set(c.wr), c.text))
            if len(vmq) > 63: errs.append(f'vmcnt overflow @{i}')
    if verbose:
        seen = set()
        for x in errs:
            key = x.split('@')[0]
            if key not in seen:
                seen.add(key); print(x)
    return errs
```

```python
import sys, struct
from asmlib import Asm, check, Ins

OPT = dict(stamps=False, force_redo=False, rs=(1, 3), pat='KKKKVVDVVVVDVVWWD', nodma=False, pre='q', post='', ln='', late='12kvo', coarse=True)
for a_ in sys.argv[2:]:
    k, _, v = a_.partition('=')
    OPT[k] = eval(v) if v else True

def f2u(x): return struct.unpack('<I', struct.pack('<f', x))[0]
CSCALE = 1.4426950408889634 * (128 ** -0.5)

S_X, S_K, S_V, S_WQ, S_WO, S_W1, S_W2, S_WS = 8, 12, 16, 20, 24, 28, 32, 36
sG, sQB, sWV = 40, 41, 42
sRING = 43
sWQO, sW1O, sW2O, sWOO = 44, 45, 46, 47
sT0, sT1, sT2, sT3 = 48, 49, 50, 51
sKVO, sWV8K, sIT, sREDO, sPART, sKV0, sCNT, sST, sFLAG = 52, 53, 54, 55, 56, 57, 58, 59, 62
def srd(b): return f's[{b}:{b+3}]'

vLANE = 255
vA = [232, 233, 234, 235]; vAH = [236, 237, 238, 239]; vB = [240, 241]; vLIN = 242
vO1K = [243, 244, 245, 246]; vOWQ = [247, 248, 249, 250]; vOW1 = [251, 252, 253, 254]
vK = [192, 193, 194, 195]; vV = [196, 197, 198, 199]; vOK = [200, 201, 202, 203]; vOV = [204, 205]
vL = [208, 209, 210, 211]; vONE = 212; vLA = 176; vNEG = 160; vS = 128
vT = 216
vSTAMP = 231
aO, aQ = 0, 128
aKF = [192, 240]; aVF = [208, 224]; aAF = [192, 208]; aBF = [224, 240]

LDS_K = [32768, 0]
LDS_V = [98304, 131072]
WS_Y = 16777216
WS_STAMP = 40 << 20

def R(f, b, n=4): return f'{f}[{b}:{b+n-1}]'
def mfma(df, d, af, a, bf, b, c=None):
    cs = R(df, d) if c is None else c
    return f'v_mfma_f32_16x16x32_bf16 {R(df, d)}, {R(af, a)}, {R(bf, b)}, {cs}'

A = Asm()
def e(x, tag=None):
    if callable(x): x()
    elif isinstance(x, tuple): A.e(x[0], x[1])
    else: A.e(x, tag)
nstamp = [0]
def stamp():
    if not OPT['stamps']: return
    i = nstamp[0]; nstamp[0] += 1
    e('s_memtime s[90:91]'); e('s_memrealtime s[94:95]'); e('s_waitcnt lgkmcnt(0)')
    e(f'v_writelane_b32 v{vSTAMP}, s90, {i}'); e(f'v_writelane_b32 v{vSTAMP}, s94, {i+31}')

def emit_gaps(mf, plan, nxt=None):
    for i, m in enumerate(mf):
        e(m)
        n = mf[i + 1] if i + 1 < len(mf) else nxt
        if n is not None and not (plan.get(i) and getattr(plan[i][0], '__name__', '') == 'war'):
            k = A.lg_need(Ins(n).rd)
            if k is not None: e(f's_waitcnt lgkmcnt({k})')
        for x in plan.get(i, []): e(x)

def mk_srd(b, p, size):
    e(f's_mov_b32 s{b}, s{p}'); e(f's_and_b32 s{b+1}, s{p+1}, 0xffff')
    e(f's_mov_b32 s{b+2}, {size}'); e(f's_mov_b32 s{b+3}, 0x20000')

def unit_lds(slot): return (slot >> 1) * 32768 + (slot & 1) * 4096
def unit_job(u):
    base = {'wq': sWQO, 'w1': sW1O, 'w2': sW2O, 'wo': sWOO}[u['kind']]
    stride = {'wq': 8192, 'w1': 3584, 'w2': 1024, 'wo': 1024}[u['kind']]
    vo = {'wq': vOWQ, 'w1': vOW1, 'w2': vO1K, 'wo': vO1K}[u['kind']]
    sr = {'wq': S_WQ, 'w1': S_W1, 'w2': S_W2, 'wo': S_WO}[u['kind']]
    su = [f's_add_u32 m0, s{sRING}, {unit_lds(u["slot"])}', f's_add_u32 s{sT0}, s{base}, {u["k0"] * stride + u["colb"]}']
    ops = [(f'buffer_load_dwordx4 v{vo[i]}, {srd(sr)}, s{sT0} offen' + (f' offset:{1024*i}' if i else '') + ' lds', u['tag']) for i in range(4)]
    return su, ops
def kv_job(which, slot, hi, delta, tag):
    l = (LDS_K if which == 'k' else LDS_V)[slot] + hi * 4096
    su = [f's_add_u32 m0, s{sWV8K}, {l}', f's_add_u32 s{sT0}, s{sKVO}, {delta + hi*4096}']
    ops = []
    for j in range(4):
        vo = vOK[j] if which == 'k' else vOV[j & 1]
        ops.append((f'buffer_load_dwordx4 v{vo}, {srd(S_K if which == "k" else S_V)}, s{sT0} offen' + (f' offset:{1024*j}' if j else '') + ' lds', tag))
    return su, ops
def store_job(base, p):
    su = [f's_add_u32 s{sT0}, s{sPART}, {base + p*4096}']
    ops = [(f'buffer_store_dwordx4 {R("v", (2*p*4 + qt)*4)}, v{vLIN}, {srd(S_WS)}, s{sT0} offen' + (f' offset:{qt*1024}' if qt else ''), 'st') for qt in range(4)]
    return su, ops
def job_now(j):
    for x in j[0] + j[1]: e(x)
def pack_pair(base, p, qt):
    a, b = base + (2*p*4 + qt)*4, base + ((2*p+1)*4 + qt)*4
    return [f'v_cvt_pk_bf16_f32 v{a}, v{a}, v{a+1}', f'v_cvt_pk_bf16_f32 v{a+1}, v{a+2}, v{a+3}',
            f'v_cvt_pk_bf16_f32 v{a+2}, v{b}, v{b+1}', f'v_cvt_pk_bf16_f32 v{a+3}, v{b+2}, v{b+3}']
def unit_reads(u, buf):
    out = []
    sl = u['slot']
    for nt in range(4):
        for h in range(2):
            if sl < 4: va, off = vA[nt], unit_lds(sl) + h * 2048
            else: va, off = vAH[nt], (sl & 1) * 4096 + h * 2048
            out.append(f'ds_read_b64_tr_b16 {R("a", aAF[buf] + nt*4 + h*2, 2)}, v{va} offset:{off}')
    return out
def unit_mfmas(u, i):
    return [mfma('v', u['acc'] + (nt*4 + qt)*4, 'a', aAF[i & 1] + nt*4, 'a', aBF[u['bbuf']] + qt*4, '0' if u['czero'] else None)
            for nt in range(4) for qt in range(4)]

def gemm_units(units, first, last, breads, jobs, fill=None, fill_from=0, barrier_at=None, ncomp=None):
    fill = fill if fill is not None else []
    ncomp = len(units) if ncomp is None else ncomp
    for i in range(first, last):
        plan = {g: [] for g in range(16)}
        nxt = units[i + 1] if i + 1 < ncomp else None
        br = breads(i)
        lds = list(br)
        if nxt is not None: lds += unit_reads(nxt, (i + 1) & 1)
        job = jobs.get(i)
        lg = [0, 1, 2, 4, 5, 6, 8, 9, 10, 12, 13, 14] if job else list(range(16))
        for g, x in zip(lg, lds): plan[g].append(x)
        if nxt is not None:
            plan[lg[len(br)]].insert(0, lambda n=nxt: A.wait_vm([n['tag']]))
        if job:
            for g, x in zip((1, 2), job[0]): plan[g].insert(0, x)
            def war(i=i):
                k = A.lg_need({('a', aAF[i & 1] + r) for r in range(16)})
                if k is not None: e(f's_waitcnt lgkmcnt({k})')
            plan[3].append(war)
            for g, x in zip((3, 7, 11, 15), job[1]): plan[g].append(x)
        if i >= fill_from:
            for g in range(16):
                if job and g in (3, 7, 11, 15): continue
                cap = 1 if g in lg[:len(lds)] else 2
                for _ in range(cap):
                    if fill: plan[g].append(fill.pop(0))
        if barrier_at == i: plan[4].insert(0, 's_barrier')
        emit_gaps(unit_mfmas(units[i], i), plan, unit_mfmas(nxt, i + 1)[0] if (nxt is not None and i + 1 < last) else None)

def xlane(regs, tmp, op):
    n = len(regs)
    out = []
    for sw in ('v_permlane32_swap_b32', 'v_permlane16_swap_b32'):
        out += [f'v_mov_b32 v{tmp+i}, v{regs[i]}' for i in range(n)]
        out += [f'{sw} v{regs[i]}, v{tmp+i}' for i in range(n)]
        out += [f'{op} v{regs[i]}, v{regs[i]}, v{tmp+i}' for i in range(n)]
    return out

def gen_main():
    RS = list(OPT['rs'])
    A.raw('.text\n.globl main_kernel\n.p2align 8\n.type main_kernel,@function')
    e('main_kernel:')
    e('s_cmp_ge_u32 s2, 256'); e('s_cbranch_scc1 L_main_end')
    e('s_load_dwordx16 s[64:79], s[0:1], 0')
    e('s_load_dwordx2 s[80:81], s[0:1], 80')
    if OPT['stamps']: e('s_memrealtime s[92:93]')
    e('s_getpc_b64 s[82:83]')
    e('L_pc0:')
    e(f's_and_b32 s{sG}, s2, 7'); e(f's_lshr_b32 s{sQB}, s2, 3')
    e(f's_lshl_b32 s{sT1}, s{sQB}, 11')
    e(f'v_lshl_add_u32 v7, v0, 3, s{sT1}')
    e('v_min_u32 v7, L_comb_end-L_pc0, v7')
    e('global_load_dword v206, v7, s[82:83]', 'warm')
    e(f'v_and_b32 v{vLANE}, 63, v0')
    e('v_lshrrev_b32 v1, 6, v0')
    e('v_lshrrev_b32 v6, 4, v0'); e('v_and_b32 v7, 15, v0')
    e(f'v_readfirstlane_b32 s{sWV}, v1')
    if OPT['stamps']: e(f'v_mov_b32 v{vSTAMP}, 0')
    e('v_mul_u32_u24 v8, 3584, v6'); e('v_lshl_add_u32 v8, v7, 5, v8')
    e('v_lshlrev_b32 v6, 13, v6'); e('v_lshl_add_u32 v6, v7, 6, v6')
    e(f'v_lshrrev_b32 v2, 2, v{vLANE}'); e('v_lshlrev_b32 v3, 10, v2')
    e(f'v_and_b32 v4, 2, v{vLANE}'); e('v_lshl_add_u32 v3, v4, 5, v3')
    e(f'v_and_b32 v5, 1, v{vLANE}'); e('v_lshl_add_u32 v3, v5, 4, v3')
    e(f's_lshl_b32 s{sT0}, s{sQB}, 16'); e(f's_lshl_b32 s{sT1}, s{sWV}, 14'); e(f's_add_u32 s{sT0}, s{sT0}, s{sT1}')
    e(f's_lshl_b32 s{sPART}, s{sG}, 21'); e(f's_add_u32 s{sPART}, s{sPART}, s{sT0}')
    e(f's_lshl_b32 s{sT1}, s{sQB}, 17'); e(f's_lshl_b32 s{sWQO}, s{sG}, 10'); e(f's_add_u32 s{sT1}, s{sT1}, s{sWQO}')
    e(f's_mul_i32 s{sT2}, s{sQB}, {16*3584}'); e(f's_mul_i32 s{sW1O}, s{sG}, 448'); e(f's_add_u32 s{sT2}, s{sT2}, s{sW1O}')
    e(f's_mul_i32 s{sW2O}, s{sG}, {224*1024}')
    e(f's_mul_i32 s{sCNT}, s{sQB}, 7168'); e(f's_add_u32 s{sCNT}, s{sCNT}, s{sW2O}')
    e(f's_lshl_b32 s{sWOO}, s{sG}, 19')
    e(f's_lshl_b32 s{sIT}, s{sQB}, 14'); e(f's_add_u32 s{sFLAG}, s{sIT}, s{sWOO}')
    e(f's_lshl_b32 s{sIT}, s{sQB}, 11'); e(f's_add_u32 s{sIT}, s{sIT}, s{sWOO}')
    e(f's_mov_b32 s{sST}, s{sT2}'); e(f's_mov_b32 s63, s{sT1}')
    e('v_mov_b32 v229, v8'); e('v_lshlrev_b32 v230, 6, v0'); e('v_lshlrev_b32 v228, 5, v0'); e('v_mov_b32 v215, v6'); e('v_lshlrev_b32 v214, 3, v0')
    WARM = {'q': (f'buffer_load_dword v207, v215, {srd(S_WQ)}, s63 offen', 'warm'),
            '1': (f'buffer_load_dword v208, v229, {srd(S_W1)}, s{sST} offen', 'warm'),
            '2': (f'buffer_load_dword v209, v228, {srd(S_W2)}, s{sCNT} offen', 'warm'),
            'k': (f'buffer_load_dword v210, v214, {srd(S_K)}, s{sIT} offen', 'warm'),
            'v': (f'buffer_load_dword v211, v214, {srd(S_V)}, s{sIT} offen', 'warm'),
            'o': (f'buffer_load_dword v213, v230, {srd(S_WO)}, s{sFLAG} offen', 'warm')}
    SRDS = {'q': (S_WQ, 70, 4194304), '1': (S_W1, 76, 1835008), '2': (S_W2, 78, 1835008), 'k': (S_K, 66, 4194304), 'v': (S_V, 68, 4194304), 'o': (S_WO, 72, 4194304)}
    e('s_waitcnt lgkmcnt(0)')
    stamp()
    for w in OPT['pre']:
        mk_srd(*SRDS.pop(w)); e(WARM[w])
    mk_srd(S_X, 64, 2097152)
    for jj in range(8):
        for i in range(2):
            e(f'buffer_load_dwordx4 {R("v", 128 + (jj*2+i)*4)}, v3, {srd(S_X)}, s{sT0} offen offset:{jj*128 + i*32}', f'x{jj}')
    for w in list(SRDS): mk_srd(*SRDS.pop(w))
    mk_srd(S_WS, 80, 64 << 20)
    for w in OPT['post']: e(WARM[w])
    e(f's_lshl_b32 s{sWV8K}, s{sWV}, 13')
    e(f's_add_u32 s{sRING}, s{sWV8K}, 65536')
    e(f's_lshl_b32 s{sT1}, s{sWV}, 8')
    e(f's_add_u32 s{sWQO}, s{sWQO}, s{sT1}')
    e(f's_lshl_b32 s{sT2}, s{sWV}, 7'); e(f's_add_u32 s{sW1O}, s{sW1O}, s{sT2}')
    e(f's_add_u32 s{sW2O}, s{sW2O}, s{sT1}')
    e(f's_add_u32 s{sKV0}, s{sWOO}, s{sWV8K}')
    e(f's_add_u32 s{sWOO}, s{sWOO}, s{sT1}')
    e(f's_mov_b32 s{sKVO}, s{sKV0}'); e(f's_mov_b32 s{sREDO}, 0')
    e(f'v_lshrrev_b32 v6, 3, v{vLANE}')
    e(f'v_lshrrev_b32 v7, 4, v{vLANE}'); e('v_lshlrev_b32 v9, 1, v7')
    e(f'v_and_b32 v8, 7, v{vLANE}'); e('v_xor_b32 v8, v8, v9')
    e('v_lshlrev_b32 v9, 4, v8')
    e(f'v_lshl_add_u32 v{vOWQ[0]}, v6, 13, v9')
    e(f'v_lshl_add_u32 v{vO1K[0]}, v6, 10, v9')
    e('v_mul_u32_u24 v10, 3584, v6'); e(f'v_add_u32 v{vOW1[0]}, v10, v9')
    e(f's_cmp_eq_u32 s{sWV}, 3'); e(f's_cselect_b32 s{sT3}, 4, 8')
    e(f'v_cmp_le_u32 vcc, s{sT3}, v8')
    e('v_mov_b32 v10, 0x40000000')
    e('s_nop 0')
    e(f'v_cndmask_b32 v{vOW1[0]}, v{vOW1[0]}, v10, vcc')
    for i in range(1, 4):
        e(f'v_add_u32 v{vOWQ[i]}, {i*(8*8192-1024)}, v{vOWQ[0]}')
        e(f'v_add_u32 v{vOW1[i]}, {i*(8*3584-1024)}, v{vOW1[0]}')
        e(f'v_add_u32 v{vO1K[i]}, {i*(8*1024-1024)}, v{vO1K[0]}')
    e(f'v_bfe_u32 v6, v{vLANE}, 2, 2'); e(f'v_and_b32 v8, 3, v{vLANE}'); e(f'v_bfe_u32 v9, v{vLANE}, 3, 2')
    e('v_lshlrev_b32 v10, 3, v8'); e('v_lshl_add_u32 v10, v6, 7, v10'); e('v_lshl_add_u32 v10, v9, 5, v10')
    e('v_lshl_add_u32 v11, v7, 9, v10'); e(f'v_add_u32 v11, s{sRING}, v11')
    e('v_lshl_add_u32 v12, v7, 10, v10'); e(f'v_add_u32 v12, {LDS_V[0]}, v12')
    for i in range(4):
        e(f'v_xor_b32 v{vA[i]}, {i*32}, v11'); e(f'v_add_u32 v{vAH[i]}, 0x10000, v{vA[i]}'); e(f'v_xor_b32 v{vV[i]}, {i*32}, v12')
    e(f'v_lshlrev_b32 v{vLIN}, 4, v{vLANE}')
    e(f'v_lshrrev_b32 v12, 5, v{vLANE}'); e(f'v_lshl_add_u32 v13, v12, 1, v{vLANE}')
    for par in range(2):
        e(f'v_add_u32 v14, {4*par}, v13'); e('v_and_b32 v14, 15, v14'); e('v_lshlrev_b32 v14, 4, v14')
        e(f'v_lshl_add_u32 v{vB[par]}, v7, 8, v14')
    e(f'v_and_b32 v11, 15, v{vLANE}'); e('v_xor_b32 v13, v7, v11'); e('v_lshlrev_b32 v13, 4, v13')
    e('v_lshl_add_u32 v14, v11, 8, v13'); e('v_lshl_add_u32 v15, v7, 8, v13')
    for i in range(4):
        e(f'v_xor_b32 v{vK[i]}, {i*64}, v14'); e(f'v_xor_b32 v{vOK[i]}, {i*64}, v15')
    e(f'v_and_b32 v13, 7, v{vLANE}'); e('v_and_b32 v14, 2, v9'); e('v_xor_b32 v13, v13, v14'); e('v_lshlrev_b32 v13, 4, v13')
    e('v_lshl_add_u32 v13, v12, 7, v13'); e(f'v_lshl_add_u32 v{vOV[0]}, v9, 8, v13')
    e(f'v_xor_b32 v{vOV[1]}, 64, v{vOV[0]}')
    vW = vT
    e(f'v_lshl_add_u32 v13, v8, 1, v2'); e('v_and_b32 v13, 15, v13'); e('v_lshlrev_b32 v13, 4, v13')
    e('v_lshl_add_u32 v13, v4, 11, v13'); e('v_lshl_add_u32 v13, v5, 9, v13')
    e(f's_lshl_b32 s{sT1}, s{sWV}, 10'); e(f'v_add_u32 v{vW}, s{sT1}, v13')
    for i in range(16): e(f'v_accvgpr_write_b32 a{aO + 7*16 + i}, 0')
    units = []
    for ks in range(16):
        for h in range(2): units.append(dict(kind='wq', k0=32*ks, colb=128*h, acc=64*h, czero=ks == 0, bbuf=ks & 1, ks=ks))
    for ks in range(16): units.append(dict(kind='w1', k0=32*ks, colb=0, acc=128, czero=ks == 0, bbuf=ks & 1, ks=ks))
    for h in range(2):
        for ks in range(7): units.append(dict(kind='w2', k0=32*ks, colb=128*h, acc=64*h, czero=ks == 0, bbuf=(h*7 + ks) & 1, ks=ks))
    for i, u in enumerate(units): u['slot'] = (i + 4) % 6; u['tag'] = f'u{i}'
    wun = []
    for h in range(2):
        for ks in range(16): wun.append(dict(kind='wo', k0=32*ks, colb=128*h, acc=64*h, czero=ks == 0, bbuf=ks & 1, ks=ks))
    for i, u in enumerate(wun): u['slot'] = i % 6; u['tag'] = f'w{i}'
    c1, sm, nm, sq = vT + 1, vT + 2, vT + 6, vT + 8
    e(f'v_mov_b32 v{c1}, 0x3f803f80')
    for i in range(4): e(f'v_mov_b32 v{sm+i}, 0'); e(f'v_mov_b32 v{sq+i}, 0')
    for jj in range(8):
        A.wait_vm([f'x{jj}'])
        for i in range(jj*8, jj*8 + 8): e(f'v_dot2_f32_bf16 v{sm + (i & 3)}, v{128+i}, v{c1}, v{sm + (i & 3)}')
    stamp()
    for w in OPT['ln']: e(WARM[w])
    e('s_nop 2')
    dq = ['s_nop 0', 's_nop 0']
    for i in range(6):
        su, ops = unit_job(units[i])
        dq.append(lambda su=su, o=ops[0]: [e(x) for x in su + [o]]); dq += ops[1:]
    def quadsum(r):
        e(f'v_add_f32 v{r}, v{r}, v{r+1}'); e(f'v_add_f32 v{r+2}, v{r+2}, v{r+3}'); e(f'v_add_f32 v{r}, v{r}, v{r+2}')
        e('s_nop 1'); e(f'v_add_f32 v{r}, v{r}, v{r} quad_perm:[1,0,3,2] row_mask:0xf bank_mask:0xf')
        e('s_nop 1'); e(f'v_add_f32 v{r}, v{r}, v{r} quad_perm:[2,3,0,1] row_mask:0xf bank_mask:0xf')
        e(f'v_mul_f32 v{r}, {f2u(1/512):#x}, v{r}')
    def rbf(r): e(f'v_cvt_pk_bf16_f32 v{r}, v{r}, v{r}'); e(f'v_and_b32 v{r}, 0xffff0000, v{r}')
    quadsum(sm)
    e(f'v_sub_f32 v{nm}, 0, v{sm}'); rbf(nm); e(f'v_mov_b32 v{nm+1}, v{nm}')
    e(f'v_add_f32 v{sm}, v{sm}, v{nm}')
    for i in range(64):
        t = 2 * i
        e(f'v_lshlrev_b32 v{t}, 16, v{128+i}'); e(f'v_and_b32 v{t+1}, 0xffff0000, v{128+i}')
        e(f'v_pk_add_f32 v[{t}:{t+1}], v[{t}:{t+1}], v[{nm}:{nm+1}]')
        ac = sq + (i & 1) * 2
        e(f'v_pk_fma_f32 v[{ac}:{ac+1}], v[{t}:{t+1}], v[{t}:{t+1}], v[{ac}:{ac+1}]')
        if i % 4 == 0 and dq: e(dq.pop(0))
    quadsum(sq)
    e(f'v_fma_f32 v{sq}, -v{sm}, v{sm}, v{sq}'); e(f'v_max_f32 v{sq}, 0, v{sq}'); rbf(sq)
    e(f'v_add_f32 v{sq}, {f2u(1e-5):#x}, v{sq}'); rbf(sq)
    e(f'v_sqrt_f32 v{sq}, v{sq}'); e(dq.pop(0)); rbf(sq)
    e(f'v_rcp_f32 v{sq}, v{sq}'); e(dq.pop(0))
    e(f'v_mul_f32 v{nm}, {f2u(CSCALE):#x}, v{sq}'); e(f'v_mov_b32 v{nm+1}, v{nm}')
    for jj in range(8):
        ob = 128 + jj * 8
        for i in range(2):
            for r in range(4):
                t = 2 * ((jj*2 + i)*4 + r)
                e(f'v_pk_mul_f32 v[{t}:{t+1}], v[{t}:{t+1}], v[{nm}:{nm+1}]')
                e(f'v_cvt_pk_bf16_f32 v{ob + (r >> 1)*4 + i*2 + (r & 1)}, v{t}, v{t+1}')
        e(f'ds_write_b128 v{vW}, {R("v", ob)} offset:{jj*8192}')
        e(f'ds_write_b128 v{vW}, {R("v", ob+4)} offset:{jj*8192+256}')
        if dq: e(dq.pop(0))
    assert not dq
    for w in OPT['late']:
        if w != 'o': e(WARM[w])
    A.wait_vm(['u0'])
    for x in unit_reads(units[0], 0): e(x)
    e('s_waitcnt lgkmcnt(8)'); e('s_barrier')
    stamp()
    def bread1(ks): return [f'ds_read_b128 {R("a", aBF[ks & 1] + qt*4)}, v{vB[ks & 1]} offset:{(ks*4+qt)*1024}' for qt in range(4)]
    def bread2(ks, buf): return [f'ds_read_b128 {R("a", aBF[buf] + qt*4)}, v{vLIN} offset:{(ks*4+qt)*1024}' for qt in range(4)]
    for x in bread1(0): e(x)
    def breads_g1(i):
        if i < 32:
            b = bread1((i // 2 + 1) & 15)
            return b[:2] if i % 2 == 0 else b[2:]
        return bread1(i - 31) if i < 47 else []
    jobs = {i: unit_job(units[i + 6]) for i in range(56)}
    jobs[56] = kv_job('k', 0, 0, 0, 'k0'); jobs[57] = kv_job('k', 0, 1, 0, 'k0')
    jobs[58] = unit_job(wun[0]); jobs[59] = unit_job(wun[1])
    jobs[60] = store_job(WS_Y, 0); jobs[61] = store_job(WS_Y, 1)
    gemm_units(units, 0, 32, breads_g1, jobs)
    stamp()
    qepi = []
    for s in range(4):
        for qt in range(4):
            a = (2*s*4 + qt) * 4
            qepi += pack_pair(0, s, qt)
            qepi += [f'v_permlane32_swap_b32 v{a}, v{a+2}', f'v_permlane32_swap_b32 v{a+1}, v{a+3}',
                     f'v_permlane16_swap_b32 v{a}, v{a+2}', f'v_permlane16_swap_b32 v{a+1}, v{a+3}']
            qepi += [f'v_accvgpr_write_b32 a{aQ + (qt*4+s)*4 + t}, v{a+t}' for t in range(4)]
    gemm_units(units, 32, 48, breads_g1, jobs, fill=qepi, barrier_at=41)
    assert not qepi
    stamp()
    e(f'v_add_u32 v{vT}, s{sWV8K}, v{vLIN}')
    for m in range(2):
        for qt in range(4):
            a = 128 + (2*m*4 + qt) * 4
            if m == 1 and qt == 3: e('s_nop 1')
            for x in pack_pair(128, m, qt): e(x)
            for t in range(4): e(f'v_pk_max_i16 v{a+t}, v{a+t}, 0')
            e(f'ds_write_b128 v{vT}, {R("v", a)} offset:{(m*4+qt)*1024}')
    e('s_waitcnt lgkmcnt(0)'); e('s_barrier')
    for x in bread2(0, 0): e(x)
    stamp()
    def breads_f2(i):
        j = i - 47
        return bread2(j % 7, j & 1) if j < 14 else []
    yepi = [x for p in range(2) for qt in range(4) for x in pack_pair(0, p, qt)]
    gemm_units(units, 48, 62, breads_f2, jobs, fill=yepi, fill_from=56)
    assert not yepi
    stamp()
    A.wait_vm(['k0'])
    e('s_barrier')
    def kreads(slot, kt, buf): return [f'ds_read_b128 {R("a", aKF[buf] + s*4)}, v{vK[s]} offset:{LDS_K[slot] + kt*4096}' for s in range(4)]
    def qk(kbuf, sbuf, czero=False):
        return [mfma('v', vS + sbuf*16 + qt*4, 'a', aKF[kbuf] + s*4, 'a', aQ + (qt*4+s)*4, None if s else ('0' if czero else R('v', vNEG + qt*4)))
                for qt in range(4) for s in range(4)]
    def vreads(slot, dt, buf):
        return [f'ds_read_b64_tr_b16 {R("a", aVF[buf] + ks*4 + h*2, 2)}, v{vV[dt & 3]} offset:{slot*32768 + ks*8192 + h*4096 + (dt >> 2)*512}'
                for ks in range(4) for h in range(2)]
    def pv(pbuf, dt, czero=False):
        return [mfma('a', aO + (dt*4+qt)*4, 'a', aVF[dt & 1] + ks*4, 'v', pbuf*64 + (ks*4+qt)*4, '0' if czero and ks == 0 else None)
                for qt in range(4) for ks in range(4)]
    RSL = [(qi, qt, ks) for qi, qt in enumerate(RS) for ks in range(4)]
    def rsum(pbuf, dt):
        sel = RSL if dt is None else RSL[dt*len(RSL)//8:(dt+1)*len(RSL)//8]
        return [mfma('v', vLA + qi*4, 'v', vONE, 'v', pbuf*64 + (ks*4+qt)*4) for qi, qt, ks in sel]
    def sm_ops(pbuf, kt):
        sb = vS + (kt & 1) * 16
        ex = [f'v_exp_f32 v{sb+i}, v{sb+i}' for i in range(16)]
        ad = [f'v_add_f32 v{vL[i >> 2]}, v{vL[i >> 2]}, v{sb+i}' if (i >> 2) not in RS else None for i in range(16)]
        cv = [f'v_cvt_pk_bf16_f32 v{pbuf*64 + ((kt >> 1)*4 + (m >> 1))*4 + (kt & 1)*2 + (m & 1)}, v{sb+2*m}, v{sb+2*m+1}' for m in range(8)]
        return ex, ad, cv
    mx = [vT, vT + 1, vT + 2, vT + 3]
    def neg_from_max():
        return xlane(mx, vT + 4, 'v_max_f32') + [f'v_sub_f32 v{vNEG + qt*4 + r}, 0, v{mx[qt]}' for qt in range(4) for r in range(4)]
    init = [f'v_mov_b32 v{vL[qt]}, 0' for qt in range(4)] + [f'v_mov_b32 v{vLA+i}, 0' for i in range(4*len(RS))]
    for x in kreads(0, 0, 0): e(x)
    job_now(kv_job('k', 1, 0, 32768, 'kv'))
    e(f'v_and_b32 v{vONE}, 15, v{vLANE}'); e(f'v_cmp_eq_u32 vcc, 0, v{vONE}'); e(f'v_mov_b32 v{vONE+1}, 0x3f803f80'); e('s_nop 0')
    e(f'v_cndmask_b32 v{vONE}, 0, v{vONE+1}, vcc')
    for i in range(1, 4): e(f'v_mov_b32 v{vONE+i}, v{vONE}')
    yepi = [x for p in range(2, 4) for qt in range(4) for x in pack_pair(0, p, qt)]
    emit_gaps(qk(0, 0, True), {g: yepi[2*g:2*g+2] for g in range(16)})
    job_now(kv_job('k', 1, 1, 32768, 'kv'))
    for qt in range(4):
        a = vS + qt*4
        e(f'v_max3_f32 v{mx[qt]}, v{a}, v{a+1}, v{a+2}'); e(f'v_max_f32 v{mx[qt]}, v{mx[qt]}, v{a+3}')
    if OPT['force_redo']:
        for qt in range(4): e(f'v_add_f32 v{mx[qt]}, {f2u(-64.0):#x}, v{mx[qt]}')
    for x in neg_from_max(): e(x)
    fjobs = [kv_job('v', 0, 0, 0, 'kv'), kv_job('v', 0, 1, 0, 'kv'), store_job(WS_Y, 2), store_job(WS_Y, 3)]
    stamp()
    e('L_attn:')
    carry = []
    def dense_sm(plan, g0, sm):
        ex, ad, cv = sm
        for i in range(16):
            p = plan.setdefault(g0 + i, [])
            if i == 0:
                p.extend(carry); carry.clear()
            else:
                if ad[i-1]: p.append(ad[i-1])
                if i % 2 == 0: p.append(cv[i//2 - 1])
            p.append(ex[i])
        carry.extend([x for x in (cv[7], ad[15]) if x])
    PAT = OPT['pat']
    def steady_sm(plan, sm):
        ex, ad, cv = sm
        avail = [(0, x) for x in carry]; carry.clear()
        for i in range(16):
            if i & 1: avail.append((2*i + 2, cv[i >> 1]))
            if ad[i]: avail.append((2*i + 2, ad[i]))
        for k, ty in enumerate(PAT):
            g = 2 * k
            p = plan.setdefault(g, [])
            for _ in range({'K': 1, 'V': 1, 'W': 2, 'X': 3, 'D': 0}[ty]):
                cand = [j for j, (t, x) in enumerate(avail) if t <= g]
                if not cand: break
                p.append(avail.pop(cand[0])[1])
            if k < 16: plan.setdefault(g + 1, []).append(ex[k])
        rest = [x for t, x in avail]
        rest.sort(key=lambda x: 0 if 'cvt' in x else 1)
        carry.extend(rest)
    for j in range(7):
        plan = {g: [] for g in range(16)}
        if j: dense_sm(plan, 0, sm_ops(0, j - 1))
        else:
            for g, x in enumerate(init): plan[g % 16].append(x)
        for g, x in zip((0, 2, 4, 6), kreads(0, j + 1, (j + 1) & 1)): plan[g].insert(0, x)
        if j < 4:
            if j >= 2:
                plan[8].insert(0, lambda j=j: (e(f's_cmp_lg_u32 s{sREDO}, 0'), e(f's_cbranch_scc1 L_noy{j}'), job_now(fjobs[j]), e(f'L_noy{j}:')))
            else:
                for g, x in zip((1, 3), fjobs[j][0]): plan[g].insert(0, x)
                for g, x in zip((5, 9, 11, 13), fjobs[j][1]): plan[g].insert(0, x)
        emit_gaps(qk(j & 1, j & 1), plan, qk((j + 1) & 1, 0)[3])
    def segment(b):
        e('s_waitcnt vmcnt(0) lgkmcnt(0)'); e('s_barrier')
        dj = [kv_job('k', (b+1) & 1, 0, 65536, 'kv'), kv_job('k', (b+1) & 1, 1, 65536, 'kv'), kv_job('v', b & 1, 0, 32768, 'kv'), kv_job('v', b & 1, 1, 32768, 'kv')]
        dn = 0
        for per in range(8):
            plan = {g: [] for g in range(36)}
            if per == 0 and b < 0:
                first, ex_m = qk(1, 1), []
                dense_sm(plan, 0, sm_ops(0, 6)); dense_sm(plan, 16, sm_ops(0, 7))
            elif per == 0:
                first, ex_m = pv(b & 1, 7), rsum(b & 1, 7)
                steady_sm(plan, sm_ops((b+1) & 1, 7))
            else:
                first, ex_m = pv((b+1) & 1, per - 1, b < 0), rsum((b+1) & 1, per - 1)
                steady_sm(plan, sm_ops(b & 1, per - 1))
            mf = first + qk(0, per & 1) + ex_m
            kr, vr = kreads(b & 1, per, 0), vreads((b+1) & 1, per, per & 1)
            for k, ty in enumerate(PAT):
                g = 2 * k
                if ty == 'K': plan[g].insert(0, kr.pop(0))
                elif ty == 'V': plan[g].insert(0, vr.pop(0))
                elif ty == 'D' and dn < 16 and g < len(mf) and not OPT['nodma']:
                    if dn % 4 == 0:
                        plan[g-3].insert(0, dj[dn//4][0][0]); plan[g-1].insert(0, dj[dn//4][0][1])
                    plan[g].insert(0, dj[dn//4][1][dn % 4]); dn += 1
            assert not kr and not vr and all(not plan[g] for g in range(len(mf), 36))
            if b < 0 and per == 0 and 'o' in OPT['late']: plan[1].insert(0, (WARM['o'][0].replace('v213', 'v206'), 'warm'))
            if OPT['coarse']:
                def wk(): e(f"s_waitcnt lgkmcnt({A.lg_need({('a', aKF[0] + r) for r in range(16)})})")
                wk.__name__ = 'war'
                plan[15].insert(0, wk)
                if per < 7: plan[31].insert(0, 's_waitcnt lgkmcnt(0)')
            if per == 7: plan[27].insert(0, f's_add_u32 s{sKVO}, s{sKVO}, 32768')
            if per == 7 and b == 1:
                plan[25].insert(0, f's_sub_u32 s{sIT}, s{sIT}, 1'); plan[29].insert(0, f's_cmp_lg_u32 s{sIT}, 0')
            emit_gaps(mf, plan, pv((b+1) & 1, per)[0] if per < 7 else None)
        assert dn == 16 or OPT['nodma']
    segment(-1)
    stamp()
    e(f's_mov_b32 s{sIT}, 7')
    A.raw('.p2align 6')
    e('L_loop:')
    mk = A.mark()
    c0 = list(carry)
    segment(0); segment(1)
    assert carry == c0, (carry, c0)
    e('s_cbranch_scc1 L_loop')
    A.repeat_trace(mk)
    stamp()
    e('s_waitcnt vmcnt(0) lgkmcnt(0)'); e('s_barrier')
    plan = {g: [] for g in range(40)}
    dense_sm(plan, 0, sm_ops(1, 7))
    for g, x in zip(range(0, 16, 2), vreads(1, 0, 0)): plan[g].insert(0, x)
    mf = pv(0, 7) + rsum(0, 7)
    plan[len(mf) - 1] += (['s_nop 0'] if len(mf) == 16 else []) + carry + ['s_nop 0']; carry.clear()
    emit_gaps(mf + rsum(1, None), plan)
    fin = ['s_nop 3'] + [f'v_mov_b32 v{vL[qt]}, v{vLA + qi*4}' for qi, qt in enumerate(RS)]
    fin += xlane(vL, vT + 4, 'v_add_f32')
    fin += [f'v_mov_b32 v{vT}, {f2u(2.0**30):#x}', f'v_and_b32 v{vT+1}, 3, v{vLANE}', f'v_lshlrev_b32 v{vT+1}, 14, v{vT+1}',
            f's_lshl_b32 s{sT2}, s{sWV}, 2', f'v_add_u32 v{vT+1}, s{sT2}, v{vT+1}', f's_lshl_b32 s{sT2}, s{sWV}, 14', f'v_add_u32 v{vT+2}, s{sT2}, v{vLIN}',
            f'v_mov_b32 v{vT+3}, s{sT2}']
    fin += [f'v_cmp_nlt_f32 s[{84+2*qt}:{85+2*qt}], v{vL[qt]}, v{vT}' for qt in range(3)] + [f'v_cmp_nlt_f32 vcc, v{vL[3]}, v{vT}']
    fin += [f'v_rcp_f32 v{vL[qt]}, v{vL[qt]}' for qt in range(4)]
    fin += [lambda: [e(x) for x in ('s_or_b64 s[84:85], s[84:85], s[86:87]', 's_or_b64 s[88:89], s[88:89], vcc', 's_or_b64 s[84:85], s[84:85], s[88:89]',
                                    f's_cselect_b32 s{sT1}, 1, 0', f'v_mov_b32 v{vT}, s{sT1}', f'ds_write_b32 v{vT+1}, v{vT} offset:15360')]]
    def oepi(s):
        out = []
        for qt in range(4):
            tb = ((s*4 + qt) & 7) * 8
            out += [f'v_accvgpr_read_b32 v{tb + t*4 + r}, a{aO + ((2*s+t)*4 + qt)*4 + r}' for t in range(2) for r in range(4)]
            out += [f'v_mul_f32 v{tb+r}, v{vL[qt]}, v{tb+r}' for r in range(8)]
            out += [f'v_cvt_pk_bf16_f32 v{tb+r}, v{tb+2*r}, v{tb+2*r+1}' for r in range(4)]
            out.append(f'ds_write_b128 v{vT+2}, {R("v", tb)} offset:{(s*4+qt)*1024}')
        return out
    pend = fin
    for dt in range(8):
        plan = {g: [] for g in range(16)}
        if dt in (2, 4, 6): pend = pend + oepi(dt // 2 - 1)
        vm = []
        if dt < 7:
            for g, x in zip(range(0, 16, 2), vreads(1, dt + 1, (dt + 1) & 1)): plan[g].append(x)
        if dt in (0, 1): vm = [unit_job(wun[2 + dt])]
        if dt == 7:
            e('s_waitcnt lgkmcnt(0)'); e('s_barrier')
            plan[0].append(f'ds_read_b128 {R("v", vT+4)}, v{vT+3} offset:15360')
            vm = [unit_job(wun[4]), unit_job(wun[5])]
        vg = [3, 5, 7, 9] if len(vm) == 1 else [2, 3, 4, 5, 8, 9, 10, 11]
        for jn, jb in enumerate(vm):
            g0 = vg[jn*4]
            plan[g0-2].insert(0, jb[0][0]); plan[g0-1].insert(0, jb[0][1])
            for g, x in zip(vg[jn*4:jn*4+4], jb[1]): plan[g].insert(0, x)
        share = (len(pend) + 1) // 2 if dt % 2 == 0 else len(pend)
        now, pend = pend[:share], pend[share:]
        for g in range(16):
            k = len(now) // (16 - g) + (1 if len(now) % (16 - g) and g % 2 else 0)
            plan[g] += now[:k]; now = now[k:]
        assert not now
        emit_gaps(pv(1, dt), plan, pv(1, dt + 1)[0] if dt < 6 else None)
    stamp()
    e(f'v_or_b32 v{vT+4}, v{vT+4}, v{vT+5}'); e(f'v_or3_b32 v{vT+4}, v{vT+4}, v{vT+6}, v{vT+7}')
    for x in unit_reads(wun[0], 0): e(x)
    e(f'v_readfirstlane_b32 s{sT1}, v{vT+4}')
    for x in oepi(3): e(x)
    e(f's_andn2_b32 s{sT1}, s{sT1}, s{sREDO}')
    e('s_waitcnt lgkmcnt(0)'); e('s_barrier')
    e('s_cbranch_scc1 L_redo')
    for x in bread2(0, 0): e(x)
    stamp()
    def breads_o(i): return bread2((i + 1) & 15, (i + 1) & 1) if i < 31 else []
    jobs = {i: unit_job(wun[i + 6]) for i in range(26)}
    jobs[27] = store_job(0, 0); jobs[28] = store_job(0, 1)
    sepi = [x for p in range(2) for qt in range(4) for x in pack_pair(0, p, qt)]
    gemm_units(wun, 0, 32, breads_o, jobs, fill=sepi, fill_from=18)
    assert not sepi
    stamp()
    for p in range(2, 4):
        su, ops = store_job(0, p)
        e(su[0])
        for qt in range(4):
            if p == 3 and qt == 3: e('s_nop 1')
            for x in pack_pair(0, p, qt): e(x)
            e(ops[qt])
    if OPT['stamps']:
        e('s_waitcnt vmcnt(0)')
        stamp()
        e(f'v_lshlrev_b32 v1, 2, v{vLANE}'); e(f's_lshl_b32 s{sT1}, s2, 10'); e(f's_lshl_b32 s{sT2}, s{sWV}, 8'); e(f's_add_u32 s{sT1}, s{sT1}, s{sT2}')
        e(f's_add_u32 s{sT1}, s{sT1}, {WS_STAMP}')
        e('s_memrealtime s[90:91]'); e('s_waitcnt lgkmcnt(0)'); e(f'v_writelane_b32 v{vSTAMP}, s90, 63'); e(f'v_writelane_b32 v{vSTAMP}, s92, 62')
        e(f'buffer_store_dword v{vSTAMP}, v1, {srd(S_WS)}, s{sT1} offen')
    e('L_main_end:')
    e('s_endpgm')
    e('L_redo:')
    e(f's_mov_b32 s{sREDO}, 1')
    e(f's_mov_b32 s{sKVO}, s{sKV0}')
    e(f's_mov_b32 s{sCNT}, 16')
    for qt in range(4): e(f'v_mov_b32 v{mx[qt]}, 0xff800000')
    e('L_redo_blk:')
    job_now(kv_job('k', 0, 0, 0, 'kv')); job_now(kv_job('k', 0, 1, 0, 'kv'))
    e('s_waitcnt vmcnt(0)'); e('s_barrier')
    for kt in range(8):
        for x in kreads(0, kt, 0): e(x)
        for x in qk(0, 0, True): e(x)
        e('s_nop 7')
        for qt in range(4):
            a = vS + qt*4
            e(f'v_max3_f32 v{mx[qt]}, v{mx[qt]}, v{a}, v{a+1}'); e(f'v_max3_f32 v{mx[qt]}, v{mx[qt]}, v{a+2}, v{a+3}')
    e('s_barrier')
    e(f's_add_u32 s{sKVO}, s{sKVO}, 32768')
    e(f's_sub_u32 s{sCNT}, s{sCNT}, 1'); e(f's_cmp_lg_u32 s{sCNT}, 0'); e('s_cbranch_scc1 L_redo_blk')
    for x in neg_from_max(): e(x)
    for i in range(16): e(f'v_accvgpr_write_b32 a{aO + 7*16 + i}, 0')
    e(f's_mov_b32 s{sKVO}, s{sKV0}')
    for hi in range(2): job_now(kv_job('k', 0, hi, 0, 'kv')); job_now(kv_job('k', 1, hi, 32768, 'kv'))
    e('s_waitcnt vmcnt(0)'); e('s_barrier')
    for x in kreads(0, 0, 0): e(x)
    e('s_waitcnt lgkmcnt(0)')
    e('s_branch L_attn')

def gen_comb():
    A.raw('.globl comb_kernel\n.p2align 8\n.type comb_kernel,@function')
    e('comb_kernel:')
    e('s_cmp_ge_u32 s2, 512'); e('s_cbranch_scc1 L_comb_end')
    if OPT['stamps']: e('s_memrealtime s[26:27]')
    e('s_load_dwordx2 s[4:5], s[0:1], 0'); e('s_load_dwordx2 s[6:7], s[0:1], 64'); e('s_load_dwordx2 s[20:21], s[0:1], 80')
    e('v_lshlrev_b32 v1, 4, v0'); e('s_lshl_b32 s3, s2, 12')
    e('v_and_b32 v2, 15, v0'); e('v_lshrrev_b32 v3, 6, v0'); e('v_lshl_add_u32 v2, v3, 4, v2')
    e('v_bfe_u32 v3, v0, 4, 2')
    e('v_lshlrev_b32 v4, 10, v2'); e('v_lshl_add_u32 v4, v3, 4, v4')
    e('s_lshr_b32 s22, s2, 4'); e('s_and_b32 s23, s2, 15'); e('s_lshl_b32 s23, s23, 6')
    e('s_lshl_b32 s24, s22, 16'); e('s_add_u32 s24, s24, s23')
    e('s_waitcnt lgkmcnt(0)')
    mk_srd(16, 20, 64 << 20); mk_srd(8, 4, 2097152); mk_srd(12, 6, 2097152)
    for i in range(16):
        e(f'buffer_load_dwordx4 {R("v", 16 + i*4)}, v1, s[16:19], s3 offen', f'p{i}')
        if i < 15: e('s_add_u32 s3, s3, 0x200000')
    e('buffer_load_dwordx4 v[8:11], v4, s[8:11], s24 offen', 'x')
    for ty in range(2):
        ac = 80 + ty * 8
        for g in range(8):
            i = ty * 8 + g
            A.wait_vm([f'p{i}'])
            for r in range(4):
                src = 16 + i*4 + r
                if g == 0:
                    e(f'v_lshlrev_b32 v{ac+2*r}, 16, v{src}'); e(f'v_and_b32 v{ac+2*r+1}, 0xffff0000, v{src}')
                else:
                    t = 96 + (r & 1) * 2
                    e(f'v_lshlrev_b32 v{t}, 16, v{src}'); e(f'v_and_b32 v{t+1}, 0xffff0000, v{src}')
                    e(f'v_pk_add_f32 v[{ac+2*r}:{ac+2*r+1}], v[{ac+2*r}:{ac+2*r+1}], v[{t}:{t+1}]')
    e('s_waitcnt vmcnt(0)')
    def rnd(lo, n):
        for r in range(0, n, 2):
            e(f'v_cvt_pk_bf16_f32 v96, v{lo+r}, v{lo+r+1}')
            e(f'v_lshlrev_b32 v{lo+r}, 16, v96'); e(f'v_and_b32 v{lo+r+1}, 0xffff0000, v96')
    for r in range(8): e(f'v_mul_f32 v{88+r}, {f2u(1/CSCALE):#x}, v{88+r}')
    rnd(80, 16)
    for r in range(8): e(f'v_mul_f32 v{16+r}, {f2u(-1.4426950408889634):#x}, v{88+r}')
    for r in range(8): e(f'v_exp_f32 v{16+r}, v{16+r}')
    for r in range(8): e(f'v_add_f32 v{16+r}, 1.0, v{16+r}')
    for r in range(8): e(f'v_rcp_f32 v{16+r}, v{16+r}')
    for r in range(8): e(f'v_mul_f32 v{88+r}, v{88+r}, v{16+r}')
    rnd(88, 8)
    for r in range(8): e(f'v_mul_f32 v{80+r}, v{80+r}, v{88+r}')
    for r in range(4): e(f'v_cvt_pk_bf16_f32 v{24+r}, v{80+2*r}, v{80+2*r+1}')
    e('s_nop 0')
    e('v_permlane32_swap_b32 v24, v26'); e('v_permlane32_swap_b32 v25, v27')
    e('s_nop 0')
    e('v_permlane16_swap_b32 v24, v26'); e('v_permlane16_swap_b32 v25, v27')
    for r in range(4):
        e(f'v_lshlrev_b32 v32, 16, v{24+r}'); e(f'v_and_b32 v33, 0xffff0000, v{24+r}')
        e(f'v_lshlrev_b32 v34, 16, v{8+r}'); e(f'v_and_b32 v35, 0xffff0000, v{8+r}')
        e('v_pk_add_f32 v[32:33], v[32:33], v[34:35]')
        e(f'v_cvt_pk_bf16_f32 v{28+r}, v32, v33')
    e('buffer_store_dwordx4 v[28:31], v4, s[12:15], s24 offen')
    if OPT['stamps']:
        e('s_waitcnt vmcnt(0)'); e('s_memrealtime s[28:29]'); e('s_waitcnt lgkmcnt(0)')
        e('v_mov_b32 v40, s26'); e('v_mov_b32 v41, s28'); e('v_mov_b32 v42, 0')
        e('s_lshl_b32 s3, s2, 3'); e(f's_add_u32 s3, s3, {WS_STAMP + (1 << 20)}')
        e('buffer_store_dwordx2 v[40:41], v42, s[16:19], s3 offen')
    e('L_comb_end:')
    e('s_endpgm')

def desc(name, vgpr, acc, sgpr):
    return f""".p2align 6
.amdhsa_kernel {name}
  .amdhsa_next_free_vgpr {vgpr}
  .amdhsa_next_free_sgpr {sgpr}
  .amdhsa_accum_offset {acc}
  .amdhsa_group_segment_fixed_size 0
  .amdhsa_kernarg_size 88
  .amdhsa_user_sgpr_count 2
  .amdhsa_user_sgpr_kernarg_segment_ptr 1
  .amdhsa_system_sgpr_workgroup_id_x 1
  .amdhsa_float_denorm_mode_32 3
.end_amdhsa_kernel
"""

HEAD = """; Fused LayerNorm + Q projection + ReLU FFN + GQA attention + output projection, then a combine kernel.
; @launch kernel=main_kernel grid=(256,1,1) block=(256,1,1) lds=163840
; @launch kernel=comb_kernel grid=(512,1,1) block=(256,1,1) lds=0
.amdgcn_target "amdgcn-amd-amdhsa--gfx950"
"""
gen_main()
errs = check(A.trace)
A.trace = []; A.vm = []; A.lg = []
gen_comb()
errs += check(A.trace)
out = HEAD + A.text() + '.section .rodata,"a"\n' + desc('main_kernel', 512, 256, 100) + desc('comb_kernel', 104, 104, 32)
open(sys.argv[1], 'w').write(out)
print('errors:', len(errs), 'lines:', out.count('\n'))
```

```python
import sys, struct
from asmlib import Asm, check, Ins

OPT = dict(stamps=False, force_redo=False, rs=(1, 3), pat='KKKKVVDVVVVDVVWWD', nodma=False, pre='q', post='', ln='', late='12kvo', coarse=True)
for a_ in sys.argv[2:]:
    k, _, v = a_.partition('=')
    OPT[k] = eval(v) if v else True

def f2u(x): return struct.unpack('<I', struct.pack('<f', x))[0]
CSCALE = 1.4426950408889634 * (128 ** -0.5)

S_X, S_K, S_V, S_WQ, S_WO, S_W1, S_W2, S_WS = 8, 12, 16, 20, 24, 28, 32, 36
sG, sQB, sWV = 40, 41, 42
sRING = 43
sWQO, sW1O, sW2O, sWOO = 44, 45, 46, 47
sT0, sT1, sT2, sT3 = 48, 49, 50, 51
sKVO, sWV8K, sIT, sREDO, sPART, sKV0, sCNT, sST, sFLAG = 52, 53, 54, 55, 56, 57, 58, 59, 62
def srd(b): return f's[{b}:{b+3}]'

vLANE = 255
vA = [232, 233, 234, 235]; vAH = [236, 237, 238, 239]; vB = [240, 241]; vLIN = 242
vO1K = [243, 244, 245, 246]; vOWQ = [247, 248, 249, 250]; vOW1 = [251, 252, 253, 254]
vK = [192, 193, 194, 195]; vV = [196, 197, 198, 199]; vOK = [200, 201, 202, 203]; vOV = [204, 205]
vL = [208, 209, 210, 211]; vONE = 212; vLA = 176; vNEG = 160; vS = 128
vT = 216
vSTAMP = 231
aO, aQ = 0, 128
aKF = [192, 240]; aVF = [208, 224]; aAF = [192, 208]; aBF = [224, 240]

LDS_K = [32768, 0]
LDS_V = [98304, 131072]
WS_Y = 16777216
WS_STAMP = 40 << 20

def R(f, b, n=4): return f'{f}[{b}:{b+n-1}]'
def mfma(df, d, af, a, bf, b, c=None):
    cs = R(df, d) if c is None else c
    return f'v_mfma_f32_16x16x32_bf16 {R(df, d)}, {R(af, a)}, {R(bf, b)}, {cs}'

A = Asm()
def e(x, tag=None):
    if callable(x): x()
    elif isinstance(x, tuple): A.e(x[0], x[1])
    else: A.e(x, tag)
nstamp = [0]
def stamp():
    if not OPT['stamps']: return
    i = nstamp[0]; nstamp[0] += 1
    e('s_memtime s[90:91]'); e('s_memrealtime s[94:95]'); e('s_waitcnt lgkmcnt(0)')
    e(f'v_writelane_b32 v{vSTAMP}, s90, {i}'); e(f'v_writelane_b32 v{vSTAMP}, s94, {i+31}')

def emit_gaps(mf, plan, nxt=None):
    for i, m in enumerate(mf):
        e(m)
        n = mf[i + 1] if i + 1 < len(mf) else nxt
        if n is not None and not (plan.get(i) and getattr(plan[i][0], '__name__', '') == 'war'):
            k = A.lg_need(Ins(n).rd)
            if k is not None: e(f's_waitcnt lgkmcnt({k})')
        for x in plan.get(i, []): e(x)

def mk_srd(b, p, size):
    e(f's_mov_b32 s{b}, s{p}'); e(f's_and_b32 s{b+1}, s{p+1}, 0xffff')
    e(f's_mov_b32 s{b+2}, {size}'); e(f's_mov_b32 s{b+3}, 0x20000')

def unit_lds(slot): return (slot >> 1) * 32768 + (slot & 1) * 4096
def unit_job(u):
    base = {'wq': sWQO, 'w1': sW1O, 'w2': sW2O, 'wo': sWOO}[u['kind']]
    stride = {'wq': 8192, 'w1': 3584, 'w2': 1024, 'wo': 1024}[u['kind']]
    vo = {'wq': vOWQ, 'w1': vOW1, 'w2': vO1K, 'wo': vO1K}[u['kind']]
    sr = {'wq': S_WQ, 'w1': S_W1, 'w2': S_W2, 'wo': S_WO}[u['kind']]
    su = [f's_add_u32 m0, s{sRING}, {unit_lds(u["slot"])}', f's_add_u32 s{sT0}, s{base}, {u["k0"] * stride + u["colb"]}']
    ops = [(f'buffer_load_dwordx4 v{vo[i]}, {srd(sr)}, s{sT0} offen' + (f' offset:{1024*i}' if i else '') + ' lds', u['tag']) for i in range(4)]
    return su, ops
def kv_job(which, slot, hi, delta, tag):
    l = (LDS_K if which == 'k' else LDS_V)[slot] + hi * 4096
    su = [f's_add_u32 m0, s{sWV8K}, {l}', f's_add_u32 s{sT0}, s{sKVO}, {delta + hi*4096}']
    ops = []
    for j in range(4):
        vo = vOK[j] if which == 'k' else vOV[j & 1]
        ops.append((f'buffer_load_dwordx4 v{vo}, {srd(S_K if which == "k" else S_V)}, s{sT0} offen' + (f' offset:{1024*j}' if j else '') + ' lds', tag))
    return su, ops
def store_job(base, p):
    su = [f's_add_u32 s{sT0}, s{sPART}, {base + p*4096}']
    ops = [(f'buffer_store_dwordx4 {R("v", (2*p*4 + qt)*4)}, v{vLIN}, {srd(S_WS)}, s{sT0} offen' + (f' offset:{qt*1024}' if qt else ''), 'st') for qt in range(4)]
    return su, ops
def job_now(j):
    for x in j[0] + j[1]: e(x)
def pack_pair(base, p, qt):
    a, b = base + (2*p*4 + qt)*4, base + ((2*p+1)*4 + qt)*4
    return [f'v_cvt_pk_bf16_f32 v{a}, v{a}, v{a+1}', f'v_cvt_pk_bf16_f32 v{a+1}, v{a+2}, v{a+3}',
            f'v_cvt_pk_bf16_f32 v{a+2}, v{b}, v{b+1}', f'v_cvt_pk_bf16_f32 v{a+3}, v{b+2}, v{b+3}']
def unit_reads(u, buf):
    out = []
    sl = u['slot']
    for nt in range(4):
        for h in range(2):
            if sl < 4: va, off = vA[nt], unit_lds(sl) + h * 2048
            else: va, off = vAH[nt], (sl & 1) * 4096 + h * 2048
            out.append(f'ds_read_b64_tr_b16 {R("a", aAF[buf] + nt*4 + h*2, 2)}, v{va} offset:{off}')
    return out
def unit_mfmas(u, i):
    return [mfma('v', u['acc'] + (nt*4 + qt)*4, 'a', aAF[i & 1] + nt*4, 'a', aBF[u['bbuf']] + qt*4, '0' if u['czero'] else None)
            for nt in range(4) for qt in range(4)]

def gemm_units(units, first, last, breads, jobs, fill=None, fill_from=0, barrier_at=None, ncomp=None):
    fill = fill if fill is not None else []
    ncomp = len(units) if ncomp is None else ncomp
    for i in range(first, last):
        plan = {g: [] for g in range(16)}
        nxt = units[i + 1] if i + 1 < ncomp else None
        br = breads(i)
        lds = list(br)
        if nxt is not None: lds += unit_reads(nxt, (i + 1) & 1)
        job = jobs.get(i)
        lg = [0, 1, 2, 4, 5, 6, 8, 9, 10, 12, 13, 14] if job else list(range(16))
        for g, x in zip(lg, lds): plan[g].append(x)
        if nxt is not None:
            plan[lg[len(br)]].insert(0, lambda n=nxt: A.wait_vm([n['tag']]))
        if job:
            for g, x in zip((1, 2), job[0]): plan[g].insert(0, x)
            def war(i=i):
                k = A.lg_need({('a', aAF[i & 1] + r) for r in range(16)})
                if k is not None: e(f's_waitcnt lgkmcnt({k})')
            plan[3].append(war)
            for g, x in zip((3, 7, 11, 15), job[1]): plan[g].append(x)
        if i >= fill_from:
            for g in range(16):
                if job and g in (3, 7, 11, 15): continue
                cap = 1 if g in lg[:len(lds)] else 2
                for _ in range(cap):
                    if fill: plan[g].append(fill.pop(0))
        if barrier_at == i: plan[4].insert(0, 's_barrier')
        emit_gaps(unit_mfmas(units[i], i), plan, unit_mfmas(nxt, i + 1)[0] if (nxt is not None and i + 1 < last) else None)

def xlane(regs, tmp, op):
    n = len(regs)
    out = []
    for sw in ('v_permlane32_swap_b32', 'v_permlane16_swap_b32'):
        out += [f'v_mov_b32 v{tmp+i}, v{regs[i]}' for i in range(n)]
        out += [f'{sw} v{regs[i]}, v{tmp+i}' for i in range(n)]
        out += [f'{op} v{regs[i]}, v{regs[i]}, v{tmp+i}' for i in range(n)]
    return out

def gen_main():
    RS = list(OPT['rs'])
    A.raw('.text\n.globl main_kernel\n.p2align 8\n.type main_kernel,@function')
    e('main_kernel:')
    e('s_cmp_ge_u32 s2, 256'); e('s_cbranch_scc1 L_main_end')
    e('s_load_dwordx16 s[64:79], s[0:1], 0')
    e('s_load_dwordx2 s[80:81], s[0:1], 80')
    if OPT['stamps']: e('s_memrealtime s[92:93]')
    e('s_getpc_b64 s[82:83]')
    e('L_pc0:')
    e(f's_and_b32 s{sG}, s2, 7'); e(f's_lshr_b32 s{sQB}, s2, 3')
    e(f's_lshl_b32 s{sT1}, s{sQB}, 11')
    e(f'v_lshl_add_u32 v7, v0, 3, s{sT1}')
    e('v_min_u32 v7, L_comb_end-L_pc0, v7')
    e('global_load_dword v206, v7, s[82:83]', 'warm')
    e(f'v_and_b32 v{vLANE}, 63, v0')
    e('v_lshrrev_b32 v1, 6, v0')
    e('v_lshrrev_b32 v6, 4, v0'); e('v_and_b32 v7, 15, v0')
    e(f'v_readfirstlane_b32 s{sWV}, v1')
    if OPT['stamps']: e(f'v_mov_b32 v{vSTAMP}, 0')
    e('v_mul_u32_u24 v8, 3584, v6'); e('v_lshl_add_u32 v8, v7, 5, v8')
    e('v_lshlrev_b32 v6, 13, v6'); e('v_lshl_add_u32 v6, v7, 6, v6')
    e(f'v_lshrrev_b32 v2, 2, v{vLANE}'); e('v_lshlrev_b32 v3, 10, v2')
    e(f'v_and_b32 v4, 2, v{vLANE}'); e('v_lshl_add_u32 v3, v4, 5, v3')
    e(f'v_and_b32 v5, 1, v{vLANE}'); e('v_lshl_add_u32 v3, v5, 4, v3')
    e(f's_lshl_b32 s{sT0}, s{sQB}, 16'); e(f's_lshl_b32 s{sT1}, s{sWV}, 14'); e(f's_add_u32 s{sT0}, s{sT0}, s{sT1}')
    e(f's_lshl_b32 s{sPART}, s{sG}, 21'); e(f's_add_u32 s{sPART}, s{sPART}, s{sT0}')
    e(f's_lshl_b32 s{sT1}, s{sQB}, 17'); e(f's_lshl_b32 s{sWQO}, s{sG}, 10'); e(f's_add_u32 s{sT1}, s{sT1}, s{sWQO}')
    e(f's_mul_i32 s{sT2}, s{sQB}, {16*3584}'); e(f's_mul_i32 s{sW1O}, s{sG}, 448'); e(f's_add_u32 s{sT2}, s{sT2}, s{sW1O}')
    e(f's_mul_i32 s{sW2O}, s{sG}, {224*1024}')
    e(f's_mul_i32 s{sCNT}, s{sQB}, 7168'); e(f's_add_u32 s{sCNT}, s{sCNT}, s{sW2O}')
    e(f's_lshl_b32 s{sWOO}, s{sG}, 19')
    e(f's_lshl_b32 s{sIT}, s{sQB}, 14'); e(f's_add_u32 s{sFLAG}, s{sIT}, s{sWOO}')
    e(f's_lshl_b32 s{sIT}, s{sQB}, 11'); e(f's_add_u32 s{sIT}, s{sIT}, s{sWOO}')
    e(f's_mov_b32 s{sST}, s{sT2}'); e(f's_mov_b32 s63, s{sT1}')
    e('v_mov_b32 v229, v8'); e('v_lshlrev_b32 v230, 6, v0'); e('v_lshlrev_b32 v228, 5, v0'); e('v_mov_b32 v215, v6'); e('v_lshlrev_b32 v214, 3, v0')
    WARM = {'q': (f'buffer_load_dword v207, v215, {srd(S_WQ)}, s63 offen', 'warm'),
            '1': (f'buffer_load_dword v208, v229, {srd(S_W1)}, s{sST} offen', 'warm'),
            '2': (f'buffer_load_dword v209, v228, {srd(S_W2)}, s{sCNT} offen', 'warm'),
            'k': (f'buffer_load_dword v210, v214, {srd(S_K)}, s{sIT} offen', 'warm'),
            'v': (f'buffer_load_dword v211, v214, {srd(S_V)}, s{sIT} offen', 'warm'),
            'o': (f'buffer_load_dword v213, v230, {srd(S_WO)}, s{sFLAG} offen', 'warm')}
    SRDS = {'q': (S_WQ, 70, 4194304), '1': (S_W1, 76, 1835008), '2': (S_W2, 78, 1835008), 'k': (S_K, 66, 4194304), 'v': (S_V, 68, 4194304), 'o': (S_WO, 72, 4194304)}
    e('s_waitcnt lgkmcnt(0)')
    stamp()
    for w in OPT['pre']:
        mk_srd(*SRDS.pop(w)); e(WARM[w])
    mk_srd(S_X, 64, 2097152)
    for jj in range(8):
        for i in range(2):
            e(f'buffer_load_dwordx4 {R("v", 128 + (jj*2+i)*4)}, v3, {srd(S_X)}, s{sT0} offen offset:{jj*128 + i*32}', f'x{jj}')
    for w in list(SRDS): mk_srd(*SRDS.pop(w))
    mk_srd(S_WS, 80, 64 << 20)
    for w in OPT['post']: e(WARM[w])
    e(f's_lshl_b32 s{sWV8K}, s{sWV}, 13')
    e(f's_add_u32 s{sRING}, s{sWV8K}, 65536')
    e(f's_lshl_b32 s{sT1}, s{sWV}, 8')
    e(f's_add_u32 s{sWQO}, s{sWQO}, s{sT1}')
    e(f's_lshl_b32 s{sT2}, s{sWV}, 7'); e(f's_add_u32 s{sW1O}, s{sW1O}, s{sT2}')
    e(f's_add_u32 s{sW2O}, s{sW2O}, s{sT1}')
    e(f's_add_u32 s{sKV0}, s{sWOO}, s{sWV8K}')
    e(f's_add_u32 s{sWOO}, s{sWOO}, s{sT1}')
    e(f's_mov_b32 s{sKVO}, s{sKV0}'); e(f's_mov_b32 s{sREDO}, 0')
    e(f'v_lshrrev_b32 v6, 3, v{vLANE}')
    e(f'v_lshrrev_b32 v7, 4, v{vLANE}'); e('v_lshlrev_b32 v9, 1, v7')
    e(f'v_and_b32 v8, 7, v{vLANE}'); e('v_xor_b32 v8, v8, v9')
    e('v_lshlrev_b32 v9, 4, v8')
    e(f'v_lshl_add_u32 v{vOWQ[0]}, v6, 13, v9')
    e(f'v_lshl_add_u32 v{vO1K[0]}, v6, 10, v9')
    e('v_mul_u32_u24 v10, 3584, v6'); e(f'v_add_u32 v{vOW1[0]}, v10, v9')
    e(f's_cmp_eq_u32 s{sWV}, 3'); e(f's_cselect_b32 s{sT3}, 4, 8')
    e(f'v_cmp_le_u32 vcc, s{sT3}, v8')
    e('v_mov_b32 v10, 0x40000000')
    e('s_nop 0')
    e(f'v_cndmask_b32 v{vOW1[0]}, v{vOW1[0]}, v10, vcc')
    for i in range(1, 4):
        e(f'v_add_u32 v{vOWQ[i]}, {i*(8*8192-1024)}, v{vOWQ[0]}')
        e(f'v_add_u32 v{vOW1[i]}, {i*(8*3584-1024)}, v{vOW1[0]}')
        e(f'v_add_u32 v{vO1K[i]}, {i*(8*1024-1024)}, v{vO1K[0]}')
    e(f'v_bfe_u32 v6, v{vLANE}, 2, 2'); e(f'v_and_b32 v8, 3, v{vLANE}'); e(f'v_bfe_u32 v9, v{vLANE}, 3, 2')
    e('v_lshlrev_b32 v10, 3, v8'); e('v_lshl_add_u32 v10, v6, 7, v10'); e('v_lshl_add_u32 v10, v9, 5, v10')
    e('v_lshl_add_u32 v11, v7, 9, v10'); e(f'v_add_u32 v11, s{sRING}, v11')
    e('v_lshl_add_u32 v12, v7, 10, v10'); e(f'v_add_u32 v12, {LDS_V[0]}, v12')
    for i in range(4):
        e(f'v_xor_b32 v{vA[i]}, {i*32}, v11'); e(f'v_add_u32 v{vAH[i]}, 0x10000, v{vA[i]}'); e(f'v_xor_b32 v{vV[i]}, {i*32}, v12')
    e(f'v_lshlrev_b32 v{vLIN}, 4, v{vLANE}')
    e(f'v_lshrrev_b32 v12, 5, v{vLANE}'); e(f'v_lshl_add_u32 v13, v12, 1, v{vLANE}')
    for par in range(2):
        e(f'v_add_u32 v14, {4*par}, v13'); e('v_and_b32 v14, 15, v14'); e('v_lshlrev_b32 v14, 4, v14')
        e(f'v_lshl_add_u32 v{vB[par]}, v7, 8, v14')
    e(f'v_and_b32 v11, 15, v{vLANE}'); e('v_xor_b32 v13, v7, v11'); e('v_lshlrev_b32 v13, 4, v13')
    e('v_lshl_add_u32 v14, v11, 8, v13'); e('v_lshl_add_u32 v15, v7, 8, v13')
    for i in range(4):
        e(f'v_xor_b32 v{vK[i]}, {i*64}, v14'); e(f'v_xor_b32 v{vOK[i]}, {i*64}, v15')
    e(f'v_and_b32 v13, 7, v{vLANE}'); e('v_and_b32 v14, 2, v9'); e('v_xor_b32 v13, v13, v14'); e('v_lshlrev_b32 v13, 4, v13')
    e('v_lshl_add_u32 v13, v12, 7, v13'); e(f'v_lshl_add_u32 v{vOV[0]}, v9, 8, v13')
    e(f'v_xor_b32 v{vOV[1]}, 64, v{vOV[0]}')
    vW = vT
    e(f'v_lshl_add_u32 v13, v8, 1, v2'); e('v_and_b32 v13, 15, v13'); e('v_lshlrev_b32 v13, 4, v13')
    e('v_lshl_add_u32 v13, v4, 11, v13'); e('v_lshl_add_u32 v13, v5, 9, v13')
    e(f's_lshl_b32 s{sT1}, s{sWV}, 10'); e(f'v_add_u32 v{vW}, s{sT1}, v13')
    for i in range(16): e(f'v_accvgpr_write_b32 a{aO + 7*16 + i}, 0')
    units = []
    for ks in range(16):
        for h in range(2): units.append(dict(kind='wq', k0=32*ks, colb=128*h, acc=64*h, czero=ks == 0, bbuf=ks & 1, ks=ks))
    for ks in range(16): units.append(dict(kind='w1', k0=32*ks, colb=0, acc=128, czero=ks == 0, bbuf=ks & 1, ks=ks))
    for h in range(2):
        for ks in range(7): units.append(dict(kind='w2', k0=32*ks, colb=128*h, acc=64*h, czero=ks == 0, bbuf=(h*7 + ks) & 1, ks=ks))
    for i, u in enumerate(units): u['slot'] = (i + 4) % 6; u['tag'] = f'u{i}'
    wun = []
    for h in range(2):
        for ks in range(16): wun.append(dict(kind='wo', k0=32*ks, colb=128*h, acc=64*h, czero=ks == 0, bbuf=ks & 1, ks=ks))
    for i, u in enumerate(wun): u['slot'] = i % 6; u['tag'] = f'w{i}'
    c1, sm, nm, sq = vT + 1, vT + 2, vT + 6, vT + 8
    e(f'v_mov_b32 v{c1}, 0x3f803f80')
    for i in range(4): e(f'v_mov_b32 v{sm+i}, 0'); e(f'v_mov_b32 v{sq+i}, 0')
    for jj in range(8):
        A.wait_vm([f'x{jj}'])
        for i in range(jj*8, jj*8 + 8): e(f'v_dot2_f32_bf16 v{sm + (i & 3)}, v{128+i}, v{c1}, v{sm + (i & 3)}')
    stamp()
    for w in OPT['ln']: e(WARM[w])
    e('s_nop 2')
    dq = ['s_nop 0', 's_nop 0']
    for i in range(6):
        su, ops = unit_job(units[i])
        dq.append(lambda su=su, o=ops[0]: [e(x) for x in su + [o]]); dq += ops[1:]
    def quadsum(r):
        e(f'v_add_f32 v{r}, v{r}, v{r+1}'); e(f'v_add_f32 v{r+2}, v{r+2}, v{r+3}'); e(f'v_add_f32 v{r}, v{r}, v{r+2}')
        e('s_nop 1'); e(f'v_add_f32 v{r}, v{r}, v{r} quad_perm:[1,0,3,2] row_mask:0xf bank_mask:0xf')
        e('s_nop 1'); e(f'v_add_f32 v{r}, v{r}, v{r} quad_perm:[2,3,0,1] row_mask:0xf bank_mask:0xf')
        e(f'v_mul_f32 v{r}, {f2u(1/512):#x}, v{r}')
    def rbf(r): e(f'v_cvt_pk_bf16_f32 v{r}, v{r}, v{r}'); e(f'v_and_b32 v{r}, 0xffff0000, v{r}')
    quadsum(sm)
    e(f'v_sub_f32 v{nm}, 0, v{sm}'); rbf(nm); e(f'v_mov_b32 v{nm+1}, v{nm}')
    e(f'v_add_f32 v{sm}, v{sm}, v{nm}')
    for i in range(64):
        t = 2 * i
        e(f'v_lshlrev_b32 v{t}, 16, v{128+i}'); e(f'v_and_b32 v{t+1}, 0xffff0000, v{128+i}')
        e(f'v_pk_add_f32 v[{t}:{t+1}], v[{t}:{t+1}], v[{nm}:{nm+1}]')
        ac = sq + (i & 1) * 2
        e(f'v_pk_fma_f32 v[{ac}:{ac+1}], v[{t}:{t+1}], v[{t}:{t+1}], v[{ac}:{ac+1}]')
        if i % 4 == 0 and dq: e(dq.pop(0))
    quadsum(sq)
    e(f'v_fma_f32 v{sq}, -v{sm}, v{sm}, v{sq}'); e(f'v_max_f32 v{sq}, 0, v{sq}'); rbf(sq)
    e(f'v_add_f32 v{sq}, {f2u(1e-5):#x}, v{sq}'); rbf(sq)
    e(f'v_sqrt_f32 v{sq}, v{sq}'); e(dq.pop(0)); rbf(sq)
    e(f'v_rcp_f32 v{sq}, v{sq}'); e(dq.pop(0))
    e(f'v_mul_f32 v{nm}, {f2u(CSCALE):#x}, v{sq}'); e(f'v_mov_b32 v{nm+1}, v{nm}')
    for jj in range(8):
        ob = 128 + jj * 8
        for i in range(2):
            for r in range(4):
                t = 2 * ((jj*2 + i)*4 + r)
                e(f'v_pk_mul_f32 v[{t}:{t+1}], v[{t}:{t+1}], v[{nm}:{nm+1}]')
                e(f'v_cvt_pk_bf16_f32 v{ob + (r >> 1)*4 + i*2 + (r & 1)}, v{t}, v{t+1}')
        e(f'ds_write_b128 v{vW}, {R("v", ob)} offset:{jj*8192}')
        e(f'ds_write_b128 v{vW}, {R("v", ob+4)} offset:{jj*8192+256}')
        if dq: e(dq.pop(0))
    assert not dq
    for w in OPT['late']:
        if w != 'o': e(WARM[w])
    A.wait_vm(['u0'])
    for x in unit_reads(units[0], 0): e(x)
    e('s_waitcnt lgkmcnt(8)'); e('s_barrier')
    stamp()
    def bread1(ks): return [f'ds_read_b128 {R("a", aBF[ks & 1] + qt*4)}, v{vB[ks & 1]} offset:{(ks*4+qt)*1024}' for qt in range(4)]
    def bread2(ks, buf): return [f'ds_read_b128 {R("a", aBF[buf] + qt*4)}, v{vLIN} offset:{(ks*4+qt)*1024}' for qt in range(4)]
    for x in bread1(0): e(x)
    def breads_g1(i):
        if i < 32:
            b = bread1((i // 2 + 1) & 15)
            return b[:2] if i % 2 == 0 else b[2:]
        return bread1(i - 31) if i < 47 else []
    jobs = {i: unit_job(units[i + 6]) for i in range(56)}
    jobs[56] = kv_job('k', 0, 0, 0, 'k0'); jobs[57] = kv_job('k', 0, 1, 0, 'k0')
    jobs[58] = unit_job(wun[0]); jobs[59] = unit_job(wun[1])
    jobs[60] = store_job(WS_Y, 0); jobs[61] = store_job(WS_Y, 1)
    gemm_units(units, 0, 32, breads_g1, jobs)
    stamp()
    qepi = []
    for s in range(4):
        for qt in range(4):
            a = (2*s*4 + qt) * 4
            qepi += pack_pair(0, s, qt)
            qepi += [f'v_permlane32_swap_b32 v{a}, v{a+2}', f'v_permlane32_swap_b32 v{a+1}, v{a+3}',
                     f'v_permlane16_swap_b32 v{a}, v{a+2}', f'v_permlane16_swap_b32 v{a+1}, v{a+3}']
            qepi += [f'v_accvgpr_write_b32 a{aQ + (qt*4+s)*4 + t}, v{a+t}' for t in range(4)]
    gemm_units(units, 32, 48, breads_g1, jobs, fill=qepi, barrier_at=41)
    assert not qepi
    stamp()
    e(f'v_add_u32 v{vT}, s{sWV8K}, v{vLIN}')
    for m in range(2):
        for qt in range(4):
            a = 128 + (2*m*4 + qt) * 4
            if m == 1 and qt == 3: e('s_nop 1')
            for x in pack_pair(128, m, qt): e(x)
            for t in range(4): e(f'v_pk_max_i16 v{a+t}, v{a+t}, 0')
            e(f'ds_write_b128 v{vT}, {R("v", a)} offset:{(m*4+qt)*1024}')
    e('s_waitcnt lgkmcnt(0)'); e('s_barrier')
    for x in bread2(0, 0): e(x)
    stamp()
    def breads_f2(i):
        j = i - 47
        return bread2(j % 7, j & 1) if j < 14 else []
    yepi = [x for p in range(2) for qt in range(4) for x in pack_pair(0, p, qt)]
    gemm_units(units, 48, 62, breads_f2, jobs, fill=yepi, fill_from=56)
    assert not yepi
    stamp()
    A.wait_vm(['k0'])
    e('s_barrier')
    def kreads(slot, kt, buf): return [f'ds_read_b128 {R("a", aKF[buf] + s*4)}, v{vK[s]} offset:{LDS_K[slot] + kt*4096}' for s in range(4)]
    def qk(kbuf, sbuf, czero=False):
        return [mfma('v', vS + sbuf*16 + qt*4, 'a', aKF[kbuf] + s*4, 'a', aQ + (qt*4+s)*4, None if s else ('0' if czero else R('v', vNEG + qt*4)))
                for qt in range(4) for s in range(4)]
    def vreads(slot, dt, buf):
        return [f'ds_read_b64_tr_b16 {R("a", aVF[buf] + ks*4 + h*2, 2)}, v{vV[dt & 3]} offset:{slot*32768 + ks*8192 + h*4096 + (dt >> 2)*512}'
                for ks in range(4) for h in range(2)]
    def pv(pbuf, dt, czero=False):
        return [mfma('a', aO + (dt*4+qt)*4, 'a', aVF[dt & 1] + ks*4, 'v', pbuf*64 + (ks*4+qt)*4, '0' if czero and ks == 0 else None)
                for qt in range(4) for ks in range(4)]
    RSL = [(qi, qt, ks) for qi, qt in enumerate(RS) for ks in range(4)]
    def rsum(pbuf, dt):
        sel = RSL if dt is None else RSL[dt*len(RSL)//8:(dt+1)*len(RSL)//8]
        return [mfma('v', vLA + qi*4, 'v', vONE, 'v', pbuf*64 + (ks*4+qt)*4) for qi, qt, ks in sel]
    def sm_ops(pbuf, kt):
        sb = vS + (kt & 1) * 16
        ex = [f'v_exp_f32 v{sb+i}, v{sb+i}' for i in range(16)]
        ad = [f'v_add_f32 v{vL[i >> 2]}, v{vL[i >> 2]}, v{sb+i}' if (i >> 2) not in RS else None for i in range(16)]
        cv = [f'v_cvt_pk_bf16_f32 v{pbuf*64 + ((kt >> 1)*4 + (m >> 1))*4 + (kt & 1)*2 + (m & 1)}, v{sb+2*m}, v{sb+2*m+1}' for m in range(8)]
        return ex, ad, cv
    mx = [vT, vT + 1, vT + 2, vT + 3]
    def neg_from_max():
        return xlane(mx, vT + 4, 'v_max_f32') + [f'v_sub_f32 v{vNEG + qt*4 + r}, 0, v{mx[qt]}' for qt in range(4) for r in range(4)]
    init = [f'v_mov_b32 v{vL[qt]}, 0' for qt in range(4)] + [f'v_mov_b32 v{vLA+i}, 0' for i in range(4*len(RS))]
    for x in kreads(0, 0, 0): e(x)
    job_now(kv_job('k', 1, 0, 32768, 'kv'))
    e(f'v_and_b32 v{vONE}, 15, v{vLANE}'); e(f'v_cmp_eq_u32 vcc, 0, v{vONE}'); e(f'v_mov_b32 v{vONE+1}, 0x3f803f80'); e('s_nop 0')
    e(f'v_cndmask_b32 v{vONE}, 0, v{vONE+1}, vcc')
    for i in range(1, 4): e(f'v_mov_b32 v{vONE+i}, v{vONE}')
    yepi = [x for p in range(2, 4) for qt in range(4) for x in pack_pair(0, p, qt)]
    emit_gaps(qk(0, 0, True), {g: yepi[2*g:2*g+2] for g in range(16)})
    job_now(kv_job('k', 1, 1, 32768, 'kv'))
    for qt in range(4):
        a = vS + qt*4
        e(f'v_max3_f32 v{mx[qt]}, v{a}, v{a+1}, v{a+2}'); e(f'v_max_f32 v{mx[qt]}, v{mx[qt]}, v{a+3}')
    if OPT['force_redo']:
        for qt in range(4): e(f'v_add_f32 v{mx[qt]}, {f2u(-64.0):#x}, v{mx[qt]}')
    for x in neg_from_max(): e(x)
    fjobs = [kv_job('v', 0, 0, 0, 'kv'), kv_job('v', 0, 1, 0, 'kv'), store_job(WS_Y, 2), store_job(WS_Y, 3)]
    stamp()
    e('L_attn:')
    carry = []
    def dense_sm(plan, g0, sm):
        ex, ad, cv = sm
        for i in range(16):
            p = plan.setdefault(g0 + i, [])
            if i == 0:
                p.extend(carry); carry.clear()
            else:
                if ad[i-1]: p.append(ad[i-1])
                if i % 2 == 0: p.append(cv[i//2 - 1])
            p.append(ex[i])
        carry.extend([x for x in (cv[7], ad[15]) if x])
    PAT = OPT['pat']
    def steady_sm(plan, sm):
        ex, ad, cv = sm
        avail = [(0, x) for x in carry]; carry.clear()
        for i in range(16):
            if i & 1: avail.append((2*i + 2, cv[i >> 1]))
            if ad[i]: avail.append((2*i + 2, ad[i]))
        for k, ty in enumerate(PAT):
            g = 2 * k
            p = plan.setdefault(g, [])
            for _ in range({'K': 1, 'V': 1, 'W': 2, 'X': 3, 'D': 0}[ty]):
                cand = [j for j, (t, x) in enumerate(avail) if t <= g]
                if not cand: break
                p.append(avail.pop(cand[0])[1])
            if k < 16: plan.setdefault(g + 1, []).append(ex[k])
        rest = [x for t, x in avail]
        rest.sort(key=lambda x: 0 if 'cvt' in x else 1)
        carry.extend(rest)
    for j in range(7):
        plan = {g: [] for g in range(16)}
        if j: dense_sm(plan, 0, sm_ops(0, j - 1))
        else:
            for g, x in enumerate(init): plan[g % 16].append(x)
        for g, x in zip((0, 2, 4, 6), kreads(0, j + 1, (j + 1) & 1)): plan[g].insert(0, x)
        if j < 4:
            if j >= 2:
                plan[8].insert(0, lambda j=j: (e(f's_cmp_lg_u32 s{sREDO}, 0'), e(f's_cbranch_scc1 L_noy{j}'), job_now(fjobs[j]), e(f'L_noy{j}:')))
            else:
                for g, x in zip((1, 3), fjobs[j][0]): plan[g].insert(0, x)
                for g, x in zip((5, 9, 11, 13), fjobs[j][1]): plan[g].insert(0, x)
        emit_gaps(qk(j & 1, j & 1), plan, qk((j + 1) & 1, 0)[3])
    def segment(b):
        e('s_waitcnt vmcnt(0) lgkmcnt(0)'); e('s_barrier')
        dj = [kv_job('k', (b+1) & 1, 0, 65536, 'kv'), kv_job('k', (b+1) & 1, 1, 65536, 'kv'), kv_job('v', b & 1, 0, 32768, 'kv'), kv_job('v', b & 1, 1, 32768, 'kv')]
        dn = 0
        for per in range(8):
            plan = {g: [] for g in range(36)}
            if per == 0 and b < 0:
                first, ex_m = qk(1, 1), []
                dense_sm(plan, 0, sm_ops(0, 6)); dense_sm(plan, 16, sm_ops(0, 7))
            elif per == 0:
                first, ex_m = pv(b & 1, 7), rsum(b & 1, 7)
                steady_sm(plan, sm_ops((b+1) & 1, 7))
            else:
                first, ex_m = pv((b+1) & 1, per - 1, b < 0), rsum((b+1) & 1, per - 1)
                steady_sm(plan, sm_ops(b & 1, per - 1))
            mf = first + qk(0, per & 1) + ex_m
            kr, vr = kreads(b & 1, per, 0), vreads((b+1) & 1, per, per & 1)
            for k, ty in enumerate(PAT):
                g = 2 * k
                if ty == 'K': plan[g].insert(0, kr.pop(0))
                elif ty == 'V': plan[g].insert(0, vr.pop(0))
                elif ty == 'D' and dn < 16 and g < len(mf) and not OPT['nodma']:
                    if dn % 4 == 0:
                        plan[g-3].insert(0, dj[dn//4][0][0]); plan[g-1].insert(0, dj[dn//4][0][1])
                    plan[g].insert(0, dj[dn//4][1][dn % 4]); dn += 1
            assert not kr and not vr and all(not plan[g] for g in range(len(mf), 36))
            if b < 0 and per == 0 and 'o' in OPT['late']: plan[1].insert(0, (WARM['o'][0].replace('v213', 'v206'), 'warm'))
            if OPT['coarse']:
                def wk(): e(f"s_waitcnt lgkmcnt({A.lg_need({('a', aKF[0] + r) for r in range(16)})})")
                wk.__name__ = 'war'
                plan[15].insert(0, wk)
                if per < 7: plan[31].insert(0, 's_waitcnt lgkmcnt(0)')
            if per == 7: plan[27].insert(0, f's_add_u32 s{sKVO}, s{sKVO}, 32768')
            if per == 7 and b == 1:
                plan[25].insert(0, f's_sub_u32 s{sIT}, s{sIT}, 1'); plan[29].insert(0, f's_cmp_lg_u32 s{sIT}, 0')
            emit_gaps(mf, plan, pv((b+1) & 1, per)[0] if per < 7 else None)
        assert dn == 16 or OPT['nodma']
    segment(-1)
    stamp()
    e(f's_mov_b32 s{sIT}, 7')
    A.raw('.p2align 6')
    e('L_loop:')
    mk = A.mark()
    c0 = list(carry)
    segment(0); segment(1)
    assert carry == c0, (carry, c0)
    e('s_cbranch_scc1 L_loop')
    A.repeat_trace(mk)
    stamp()
    e('s_waitcnt vmcnt(0) lgkmcnt(0)'); e('s_barrier')
    plan = {g: [] for g in range(40)}
    dense_sm(plan, 0, sm_ops(1, 7))
    for g, x in zip(range(0, 16, 2), vreads(1, 0, 0)): plan[g].insert(0, x)
    mf = pv(0, 7) + rsum(0, 7)
    plan[len(mf) - 1] += (['s_nop 0'] if len(mf) == 16 else []) + carry + ['s_nop 0']; carry.clear()
    emit_gaps(mf + rsum(1, None), plan)
    fin = ['s_nop 3'] + [f'v_mov_b32 v{vL[qt]}, v{vLA + qi*4}' for qi, qt in enumerate(RS)]
    fin += xlane(vL, vT + 4, 'v_add_f32')
    fin += [f'v_mov_b32 v{vT}, {f2u(2.0**30):#x}', f'v_and_b32 v{vT+1}, 3, v{vLANE}', f'v_lshlrev_b32 v{vT+1}, 14, v{vT+1}',
            f's_lshl_b32 s{sT2}, s{sWV}, 2', f'v_add_u32 v{vT+1}, s{sT2}, v{vT+1}', f's_lshl_b32 s{sT2}, s{sWV}, 14', f'v_add_u32 v{vT+2}, s{sT2}, v{vLIN}',
            f'v_mov_b32 v{vT+3}, s{sT2}']
    fin += [f'v_cmp_nlt_f32 s[{84+2*qt}:{85+2*qt}], v{vL[qt]}, v{vT}' for qt in range(3)] + [f'v_cmp_nlt_f32 vcc, v{vL[3]}, v{vT}']
    fin += [f'v_rcp_f32 v{vL[qt]}, v{vL[qt]}' for qt in range(4)]
    fin += [lambda: [e(x) for x in ('s_or_b64 s[84:85], s[84:85], s[86:87]', 's_or_b64 s[88:89], s[88:89], vcc', 's_or_b64 s[84:85], s[84:85], s[88:89]',
                                    f's_cselect_b32 s{sT1}, 1, 0', f'v_mov_b32 v{vT}, s{sT1}', f'ds_write_b32 v{vT+1}, v{vT} offset:15360')]]
    def oepi(s):
        out = []
        for qt in range(4):
            tb = ((s*4 + qt) & 7) * 8
            out += [f'v_accvgpr_read_b32 v{tb + t*4 + r}, a{aO + ((2*s+t)*4 + qt)*4 + r}' for t in range(2) for r in range(4)]
            out += [f'v_mul_f32 v{tb+r}, v{vL[qt]}, v{tb+r}' for r in range(8)]
            out += [f'v_cvt_pk_bf16_f32 v{tb+r}, v{tb+2*r}, v{tb+2*r+1}' for r in range(4)]
            out.append(f'ds_write_b128 v{vT+2}, {R("v", tb)} offset:{(s*4+qt)*1024}')
        return out
    pend = fin
    for dt in range(8):
        plan = {g: [] for g in range(16)}
        if dt in (2, 4, 6): pend = pend + oepi(dt // 2 - 1)
        vm = []
        if dt < 7:
            for g, x in zip(range(0, 16, 2), vreads(1, dt + 1, (dt + 1) & 1)): plan[g].append(x)
        if dt in (0, 1): vm = [unit_job(wun[2 + dt])]
        if dt == 7:
            e('s_waitcnt lgkmcnt(0)'); e('s_barrier')
            plan[0].append(f'ds_read_b128 {R("v", vT+4)}, v{vT+3} offset:15360')
            vm = [unit_job(wun[4]), unit_job(wun[5])]
        vg = [3, 5, 7, 9] if len(vm) == 1 else [2, 3, 4, 5, 8, 9, 10, 11]
        for jn, jb in enumerate(vm):
            g0 = vg[jn*4]
            plan[g0-2].insert(0, jb[0][0]); plan[g0-1].insert(0, jb[0][1])
            for g, x in zip(vg[jn*4:jn*4+4], jb[1]): plan[g].insert(0, x)
        share = (len(pend) + 1) // 2 if dt % 2 == 0 else len(pend)
        now, pend = pend[:share], pend[share:]
        for g in range(16):
            k = len(now) // (16 - g) + (1 if len(now) % (16 - g) and g % 2 else 0)
            plan[g] += now[:k]; now = now[k:]
        assert not now
        emit_gaps(pv(1, dt), plan, pv(1, dt + 1)[0] if dt < 6 else None)
    stamp()
    e(f'v_or_b32 v{vT+4}, v{vT+4}, v{vT+5}'); e(f'v_or3_b32 v{vT+4}, v{vT+4}, v{vT+6}, v{vT+7}')
    for x in unit_reads(wun[0], 0): e(x)
    e(f'v_readfirstlane_b32 s{sT1}, v{vT+4}')
    for x in oepi(3): e(x)
    e(f's_andn2_b32 s{sT1}, s{sT1}, s{sREDO}')
    e('s_waitcnt lgkmcnt(0)'); e('s_barrier')
    e('s_cbranch_scc1 L_redo')
    for x in bread2(0, 0): e(x)
    stamp()
    def breads_o(i): return bread2((i + 1) & 15, (i + 1) & 1) if i < 31 else []
    jobs = {i: unit_job(wun[i + 6]) for i in range(26)}
    jobs[27] = store_job(0, 0); jobs[28] = store_job(0, 1)
    sepi = [x for p in range(2) for qt in range(4) for x in pack_pair(0, p, qt)]
    gemm_units(wun, 0, 32, breads_o, jobs, fill=sepi, fill_from=18)
    assert not sepi
    stamp()
    for p in range(2, 4):
        su, ops = store_job(0, p)
        e(su[0])
        for qt in range(4):
            if p == 3 and qt == 3: e('s_nop 1')
            for x in pack_pair(0, p, qt): e(x)
            e(ops[qt])
    if OPT['stamps']:
        e('s_waitcnt vmcnt(0)')
        stamp()
        e(f'v_lshlrev_b32 v1, 2, v{vLANE}'); e(f's_lshl_b32 s{sT1}, s2, 10'); e(f's_lshl_b32 s{sT2}, s{sWV}, 8'); e(f's_add_u32 s{sT1}, s{sT1}, s{sT2}')
        e(f's_add_u32 s{sT1}, s{sT1}, {WS_STAMP}')
        e('s_memrealtime s[90:91]'); e('s_waitcnt lgkmcnt(0)'); e(f'v_writelane_b32 v{vSTAMP}, s90, 63'); e(f'v_writelane_b32 v{vSTAMP}, s92, 62')
        e(f'buffer_store_dword v{vSTAMP}, v1, {srd(S_WS)}, s{sT1} offen')
        if OPT.get('dbgout'):
            e('s_load_dwordx2 s[84:85], s[0:1], 72'); e('s_waitcnt lgkmcnt(0)')
            mk_srd(64, 84, 64)
            e(f'v_subrev_u32 v{vSTAMP}, s92, v{vSTAMP}'); e('v_subrev_u32 v1, 124, v1')
            e(f's_lshl_b32 s{sT1}, s2, 2'); e(f's_add_u32 s{sT1}, s{sT1}, s{sWV}'); e(f's_cmp_lg_u32 s{sT1}, {OPT["dbgout"]}'); e('s_cbranch_scc1 L_main_end')
            e(f'buffer_store_dword v{vSTAMP}, v1, s[64:67], 0 offen')
    e('L_main_end:')
    e('s_endpgm')
    e('L_redo:')
    e(f's_mov_b32 s{sREDO}, 1')
    e(f's_mov_b32 s{sKVO}, s{sKV0}')
    e(f's_mov_b32 s{sCNT}, 16')
    for qt in range(4): e(f'v_mov_b32 v{mx[qt]}, 0xff800000')
    e('L_redo_blk:')
    job_now(kv_job('k', 0, 0, 0, 'kv')); job_now(kv_job('k', 0, 1, 0, 'kv'))
    e('s_waitcnt vmcnt(0)'); e('s_barrier')
    for kt in range(8):
        for x in kreads(0, kt, 0): e(x)
        for x in qk(0, 0, True): e(x)
        e('s_nop 7')
        for qt in range(4):
            a = vS + qt*4
            e(f'v_max3_f32 v{mx[qt]}, v{mx[qt]}, v{a}, v{a+1}'); e(f'v_max3_f32 v{mx[qt]}, v{mx[qt]}, v{a+2}, v{a+3}')
    e('s_barrier')
    e(f's_add_u32 s{sKVO}, s{sKVO}, 32768')
    e(f's_sub_u32 s{sCNT}, s{sCNT}, 1'); e(f's_cmp_lg_u32 s{sCNT}, 0'); e('s_cbranch_scc1 L_redo_blk')
    for x in neg_from_max(): e(x)
    for i in range(16): e(f'v_accvgpr_write_b32 a{aO + 7*16 + i}, 0')
    e(f's_mov_b32 s{sKVO}, s{sKV0}')
    for hi in range(2): job_now(kv_job('k', 0, hi, 0, 'kv')); job_now(kv_job('k', 1, hi, 32768, 'kv'))
    e('s_waitcnt vmcnt(0)'); e('s_barrier')
    for x in kreads(0, 0, 0): e(x)
    e('s_waitcnt lgkmcnt(0)')
    e('s_branch L_attn')

def gen_comb():
    A.raw('.globl comb_kernel\n.p2align 8\n.type comb_kernel,@function')
    e('comb_kernel:')
    e('s_cmp_ge_u32 s2, 512'); e('s_cbranch_scc1 L_comb_end')
    if OPT['stamps']: e('s_memrealtime s[26:27]')
    e('s_load_dwordx2 s[4:5], s[0:1], 0'); e('s_load_dwordx2 s[6:7], s[0:1], 64'); e('s_load_dwordx2 s[20:21], s[0:1], 80')
    e('v_lshlrev_b32 v1, 4, v0'); e('s_lshl_b32 s3, s2, 12')
    e('v_and_b32 v2, 15, v0'); e('v_lshrrev_b32 v3, 6, v0'); e('v_lshl_add_u32 v2, v3, 4, v2')
    e('v_bfe_u32 v3, v0, 4, 2')
    e('v_lshlrev_b32 v4, 10, v2'); e('v_lshl_add_u32 v4, v3, 4, v4')
    e('s_lshr_b32 s22, s2, 4'); e('s_and_b32 s23, s2, 15'); e('s_lshl_b32 s23, s23, 6')
    e('s_lshl_b32 s24, s22, 16'); e('s_add_u32 s24, s24, s23')
    e('s_waitcnt lgkmcnt(0)')
    mk_srd(16, 20, 64 << 20); mk_srd(8, 4, 2097152); mk_srd(12, 6, 2097152)
    for i in range(16):
        e(f'buffer_load_dwordx4 {R("v", 16 + i*4)}, v1, s[16:19], s3 offen', f'p{i}')
        if i < 15: e('s_add_u32 s3, s3, 0x200000')
    e('buffer_load_dwordx4 v[8:11], v4, s[8:11], s24 offen', 'x')
    for ty in range(2):
        ac = 80 + ty * 8
        for g in range(8):
            i = ty * 8 + g
            A.wait_vm([f'p{i}'])
            for r in range(4):
                src = 16 + i*4 + r
                if g == 0:
                    e(f'v_lshlrev_b32 v{ac+2*r}, 16, v{src}'); e(f'v_and_b32 v{ac+2*r+1}, 0xffff0000, v{src}')
                else:
                    t = 96 + (r & 1) * 2
                    e(f'v_lshlrev_b32 v{t}, 16, v{src}'); e(f'v_and_b32 v{t+1}, 0xffff0000, v{src}')
                    e(f'v_pk_add_f32 v[{ac+2*r}:{ac+2*r+1}], v[{ac+2*r}:{ac+2*r+1}], v[{t}:{t+1}]')
    e('s_waitcnt vmcnt(0)')
    def rnd(lo, n):
        for r in range(0, n, 2):
            e(f'v_cvt_pk_bf16_f32 v96, v{lo+r}, v{lo+r+1}')
            e(f'v_lshlrev_b32 v{lo+r}, 16, v96'); e(f'v_and_b32 v{lo+r+1}, 0xffff0000, v96')
    for r in range(8): e(f'v_mul_f32 v{88+r}, {f2u(1/CSCALE):#x}, v{88+r}')
    rnd(80, 16)
    for r in range(8): e(f'v_mul_f32 v{16+r}, {f2u(-1.4426950408889634):#x}, v{88+r}')
    for r in range(8): e(f'v_exp_f32 v{16+r}, v{16+r}')
    for r in range(8): e(f'v_add_f32 v{16+r}, 1.0, v{16+r}')
    for r in range(8): e(f'v_rcp_f32 v{16+r}, v{16+r}')
    for r in range(8): e(f'v_mul_f32 v{88+r}, v{88+r}, v{16+r}')
    rnd(88, 8)
    for r in range(8): e(f'v_mul_f32 v{80+r}, v{80+r}, v{88+r}')
    for r in range(4): e(f'v_cvt_pk_bf16_f32 v{24+r}, v{80+2*r}, v{80+2*r+1}')
    e('s_nop 0')
    e('v_permlane32_swap_b32 v24, v26'); e('v_permlane32_swap_b32 v25, v27')
    e('s_nop 0')
    e('v_permlane16_swap_b32 v24, v26'); e('v_permlane16_swap_b32 v25, v27')
    for r in range(4):
        e(f'v_lshlrev_b32 v32, 16, v{24+r}'); e(f'v_and_b32 v33, 0xffff0000, v{24+r}')
        e(f'v_lshlrev_b32 v34, 16, v{8+r}'); e(f'v_and_b32 v35, 0xffff0000, v{8+r}')
        e('v_pk_add_f32 v[32:33], v[32:33], v[34:35]')
        e(f'v_cvt_pk_bf16_f32 v{28+r}, v32, v33')
    e('buffer_store_dwordx4 v[28:31], v4, s[12:15], s24 offen')
    if OPT['stamps']:
        e('s_waitcnt vmcnt(0)'); e('s_memrealtime s[28:29]'); e('s_waitcnt lgkmcnt(0)')
        e('v_mov_b32 v40, s26'); e('v_mov_b32 v41, s28'); e('v_mov_b32 v42, 0')
        e('s_lshl_b32 s3, s2, 3'); e(f's_add_u32 s3, s3, {WS_STAMP + (1 << 20)}')
        e('buffer_store_dwordx2 v[40:41], v42, s[16:19], s3 offen')
    e('L_comb_end:')
    e('s_endpgm')

def desc(name, vgpr, acc, sgpr):
    return f""".p2align 6
.amdhsa_kernel {name}
  .amdhsa_next_free_vgpr {vgpr}
  .amdhsa_next_free_sgpr {sgpr}
  .amdhsa_accum_offset {acc}
  .amdhsa_group_segment_fixed_size 0
  .amdhsa_kernarg_size 88
  .amdhsa_user_sgpr_count 2
  .amdhsa_user_sgpr_kernarg_segment_ptr 1
  .amdhsa_system_sgpr_workgroup_id_x 1
  .amdhsa_float_denorm_mode_32 3
.end_amdhsa_kernel
"""

HEAD = """; Fused LayerNorm + Q projection + ReLU FFN + GQA attention + output projection, then a combine kernel.
; @launch kernel=main_kernel grid=(256,1,1) block=(256,1,1) lds=163840
; @launch kernel=comb_kernel grid=(512,1,1) block=(256,1,1) lds=0
.amdgcn_target "amdgcn-amd-amdhsa--gfx950"
"""
gen_main()
errs = check(A.trace)
A.trace = []; A.vm = []; A.lg = []
gen_comb()
errs += check(A.trace)
out = HEAD + A.text() + '.section .rodata,"a"\n' + desc('main_kernel', 512, 256, 100) + desc('comb_kernel', 104, 104, 32)
open(sys.argv[1], 'w').write(out)
print('errors:', len(errs), 'lines:', out.count('\n'))
```

```python
import sys, struct
from asmlib import Asm, check, Ins

OPT = dict(stamps=False, force_redo=False, rs=(1, 3), pat='KKKKVVDVVVVDVVWWD', nodma=False, pre='', post='', ln='', late='o', hw='kv', coarse=True, spec=0, rot=True, abl='', slp=0)
for a_ in sys.argv[2:]:
    k, _, v = a_.partition('=')
    OPT[k] = eval(v) if v else True

def f2u(x): return struct.unpack('<I', struct.pack('<f', x))[0]
CSCALE = 1.4426950408889634 * (128 ** -0.5)

S_X, S_K, S_V, S_WQ, S_WO, S_W1, S_W2, S_WS = 8, 12, 16, 20, 24, 28, 32, 36
sG, sQB, sWV = 40, 41, 42
sRING = 43
sWQO, sW1O, sW2O, sWOO = 44, 45, 46, 47
sT0, sT1, sT2, sT3 = 48, 49, 50, 51
sKVO, sWV8K, sIT, sREDO, sPART, sKV0, sCNT, sST, sFLAG = 52, 53, 54, 55, 56, 57, 58, 59, 62
def srd(b): return f's[{b}:{b+3}]'

vLANE = 255
vA = [232, 233, 234, 235]; vAH = [236, 237, 238, 239]; vB = [240, 241]; vLIN = 242
vO1K = [243, 244, 245, 246]; vOWQ = [247, 248, 249, 250]; vOW1 = [251, 252, 253, 254]
vK = [192, 193, 194, 195]; vV = [196, 197, 198, 199]; vOK = [200, 201, 202, 203]; vOV = [204, 205]
vL = [208, 209, 210, 211]; vONE = 212; vLA = 176; vNEG = 160; vS = 128
vT = 216
vSTAMP = 231
aO, aQ = 0, 128
aKF = [192, 240]; aVF = [208, 224]; aAF = [192, 208]; aBF = [224, 240]

LDS_K = [32768, 0]
LDS_V = [98304, 131072]
WS_Y = 16777216
WS_STAMP = 40 << 20
WS_FLAG = 32 << 20
S_DBG, S_OUT = 4, 96
vSIG = 207
vLINY = 229
sSENT, sROT, sW1C, sWQC = 60, 61, 88, 89
HUGE = 0x40000000
SPIN = 1 << 20

def R(f, b, n=4): return f'{f}[{b}:{b+n-1}]'
def mfma(df, d, af, a, bf, b, c=None):
    cs = R(df, d) if c is None else c
    return f'v_mfma_f32_16x16x32_bf16 {R(df, d)}, {R(af, a)}, {R(bf, b)}, {cs}'

A = Asm()
def e(x, tag=None):
    if callable(x): x()
    elif isinstance(x, list):
        for y in x: e(y)
    elif isinstance(x, tuple): A.e(x[0], x[1])
    else: A.e(x, tag)
nstamp = [0]
def stamp():
    if not OPT['stamps']: return
    i = nstamp[0]; nstamp[0] += 1
    e('s_memtime s[90:91]'); e('s_memrealtime s[94:95]'); e('s_waitcnt lgkmcnt(0)')
    e(f'v_writelane_b32 v{vSTAMP}, s90, {i}'); e(f'v_writelane_b32 v{vSTAMP}, s94, {i+31}')

def emit_gaps(mf, plan, nxt=None):
    for i, m in enumerate(mf):
        e(m)
        n = mf[i + 1] if i + 1 < len(mf) else nxt
        if n is not None and not (plan.get(i) and getattr(plan[i][0], '__name__', '') == 'war'):
            k = A.lg_need(Ins(n).rd)
            if k is not None: e(f's_waitcnt lgkmcnt({k})')
        for x in plan.get(i, []): e(x)

def mk_srd(b, p, size):
    e(f's_mov_b32 s{b}, s{p}'); e(f's_and_b32 s{b+1}, s{p+1}, 0xffff')
    e(f's_mov_b32 s{b+2}, {size}'); e(f's_mov_b32 s{b+3}, 0x20000')

def unit_lds(slot): return (slot >> 1) * 32768 + (slot & 1) * 4096
def unit_job(u):
    base = {'wq': sWQO, 'w1': sW1O, 'w2': sW2O, 'wo': sWOO}[u['kind']]
    stride = {'wq': 8192, 'w1': 3584, 'w2': 1024, 'wo': 1024}[u['kind']]
    vo = {'wq': vOWQ, 'w1': vOW1, 'w2': vO1K, 'wo': vO1K}[u['kind']]
    sr = {'wq': S_WQ, 'w1': S_W1, 'w2': S_W2, 'wo': S_WO}[u['kind']]
    su = [f's_add_u32 m0, s{sRING}, {unit_lds(u["slot"])}', f's_add_u32 s{sT0}, s{base}, {u["k0"] * stride + u["colb"]}']
    if OPT['rot'] and u['kind'] == 'wq':
        su[1] = [su[1], f's_and_b32 s{sT0}, s{sT0}, 0x3fffff']
    if u['kind'] == 'w2':
        su[1] = [su[1], f's_sub_u32 s{sT3}, s{sT0}, {7*32768}', f's_min_u32 s{sT0}, s{sT0}, s{sT3}']
    if OPT['rot'] and u['kind'] == 'w1':
        su[1] = [su[1], f's_sub_u32 s{sT3}, s{sT0}, {512*3584}', f's_min_u32 s{sT0}, s{sT0}, s{sT3}']
    ops = [(f'buffer_load_dwordx4 v{vo[i]}, {srd(sr)}, s{sT0} offen' + (f' offset:{1024*i}' if i else '') + ' lds', u['tag']) for i in range(4)]
    return su, ops
def kv_job(which, slot, hi, delta, tag):
    l = (LDS_K if which == 'k' else LDS_V)[slot] + hi * 4096
    su = [f's_add_u32 m0, s{sWV8K}, {l}', f's_add_u32 s{sT0}, s{sKVO}, {delta + hi*4096}']
    ops = []
    for j in range(4):
        vo = vOK[j] if which == 'k' else vOV[j & 1]
        ops.append((f'buffer_load_dwordx4 v{vo}, {srd(S_K if which == "k" else S_V)}, s{sT0} offen' + (f' offset:{1024*j}' if j else '') + ' lds', tag))
    return su, ops
def store_job(base, p, vo=None):
    su = [f's_add_u32 s{sT0}, s{sPART}, {base + p*4096}']
    ops = [(f'buffer_store_dwordx4 {R("v", (2*p*4 + qt)*4)}, v{vo or vLIN}, {srd(S_WS)}, s{sT0} offen' + (f' offset:{qt*1024}' if qt else '') + ' sc1', 'st') for qt in range(4)]
    return su, ops
def job_now(j):
    for x in j[0] + j[1]: e(x)
def pack_pair(base, p, qt):
    a, b = base + (2*p*4 + qt)*4, base + ((2*p+1)*4 + qt)*4
    return [f'v_cvt_pk_bf16_f32 v{a}, v{a}, v{a+1}', f'v_cvt_pk_bf16_f32 v{a+1}, v{a+2}, v{a+3}',
            f'v_cvt_pk_bf16_f32 v{a+2}, v{b}, v{b+1}', f'v_cvt_pk_bf16_f32 v{a+3}, v{b+2}, v{b+3}']
def unit_reads(u, buf):
    out = []
    sl = u['slot']
    for nt in range(4):
        for h in range(2):
            if sl < 4: va, off = vA[nt], unit_lds(sl) + h * 2048
            else: va, off = vAH[nt], (sl & 1) * 4096 + h * 2048
            out.append(f'ds_read_b64_tr_b16 {R("a", aAF[buf] + nt*4 + h*2, 2)}, v{va} offset:{off}')
    return out
def unit_mfmas(u, i):
    return [mfma('v', u['acc'] + (nt*4 + qt)*4, 'a', aAF[i & 1] + nt*4, 'a', u.get('breg', aBF[u['bbuf']]) + qt*4, '0' if u['czero'] else None)
            for nt in range(4) for qt in range(4)]

def gemm_units(units, first, last, breads, jobs, fill=None, fill_from=0, barrier_at=None, ncomp=None, xmf=None, late=None):
    fill = fill if fill is not None else []
    ncomp = len(units) if ncomp is None else ncomp
    for i in range(first, last):
        plan = {g: [] for g in range(24)}
        pre = {g: [] for g in range(3)}
        nxt = units[i + 1] if i + 1 < ncomp else None
        br = breads(i)
        lds = list(br)
        if nxt is not None: lds += unit_reads(nxt, (i + 1) & 1)
        job = jobs.get(i)
        lg = [0, 1, 2, 4, 5, 6, 8, 9, 10, 12, 13, 14] if job else list(range(16))
        for g, x in zip(lg, lds): plan[g].append(x)
        if nxt is not None:
            plan[lg[len(br)]].insert(0, lambda n=nxt: A.wait_vm([n['tag']]))
        if job:
            flat = []
            for x in job[0]: flat += x if isinstance(x, list) else [x]
            for g, x in zip({1: (2,), 2: (1, 2), 3: (0, 1, 2), 4: (0, 0, 1, 2)}[len(flat)], flat): pre[g].append(x)
            def war(i=i):
                k = A.lg_need({('a', aAF[i & 1] + r) for r in range(16)})
                if k is not None: e(f's_waitcnt lgkmcnt({k})')
            plan[3].append(war)
            for g, x in zip((3, 7, 11, 15), job[1]): plan[g].append(x)
        if i >= fill_from:
            for g in range(16):
                if job and g in (3, 7, 11, 15): continue
                cap = 1 if g in lg[:len(lds)] else 2
                for _ in range(cap):
                    if fill: plan[g].append(fill.pop(0))
        for g in range(3): plan[g] = pre[g] + plan[g]
        if barrier_at == i: plan[4].insert(0, 's_barrier')
        if late: plan[13 if not job else 9].insert(0, late)
        xm = xmf.get(i, []) if xmf else []
        emit_gaps(unit_mfmas(units[i], i) + xm, plan, unit_mfmas(nxt, i + 1)[0] if nxt is not None else None)

def xlane(regs, tmp, op):
    n = len(regs)
    out = []
    for sw in ('v_permlane32_swap_b32', 'v_permlane16_swap_b32'):
        out += [f'v_mov_b32 v{tmp+i}, v{regs[i]}' for i in range(n)]
        out += [f'{sw} v{regs[i]}, v{tmp+i}' for i in range(n)]
        out += [f'{op} v{regs[i]}, v{regs[i]}, v{tmp+i}' for i in range(n)]
    return out

def gen_main():
    RS = list(OPT['rs'])
    A.raw('.text\n.globl recurrent_scan__gqa_block_cached__dense_activation_relu__prompt_kernel\n.p2align 8\n.type recurrent_scan__gqa_block_cached__dense_activation_relu__prompt_kernel,@function')
    e('recurrent_scan__gqa_block_cached__dense_activation_relu__prompt_kernel:')
    e('s_cmp_ge_u32 s2, 256'); e('s_cbranch_scc1 L_main_end')
    e('s_load_dwordx16 s[64:79], s[0:1], 0')
    e('s_load_dwordx2 s[80:81], s[0:1], 80'); e('s_load_dwordx4 s[84:87], s[0:1], 64')
    if OPT['stamps']: e('s_memrealtime s[92:93]')
    e('s_getpc_b64 s[82:83]')
    e('L_pc0:')
    e(f's_and_b32 s{sG}, s2, 7'); e(f's_lshr_b32 s{sQB}, s2, 3')
    e(f's_lshl_b32 s{sT1}, s{sQB}, 11')
    e(f'v_lshl_add_u32 v7, v0, 3, s{sT1}')
    e('v_min_u32 v7, L_code_end-L_pc0, v7')
    e('global_load_dword v206, v7, s[82:83]', 'warm')
    e(f'v_and_b32 v{vLANE}, 63, v0')
    e('v_lshrrev_b32 v1, 6, v0')
    e('v_lshrrev_b32 v6, 4, v0'); e('v_and_b32 v7, 15, v0')
    e(f'v_readfirstlane_b32 s{sWV}, v1')
    if OPT['stamps']: e(f'v_mov_b32 v{vSTAMP}, 0')
    e('v_mul_u32_u24 v8, 3584, v6'); e('v_lshl_add_u32 v8, v7, 5, v8')
    e('v_lshlrev_b32 v6, 13, v6'); e('v_lshl_add_u32 v6, v7, 6, v6')
    e(f'v_lshrrev_b32 v2, 2, v{vLANE}'); e('v_lshlrev_b32 v3, 10, v2')
    e(f'v_and_b32 v4, 2, v{vLANE}'); e('v_lshl_add_u32 v3, v4, 5, v3')
    e(f'v_and_b32 v5, 1, v{vLANE}'); e('v_lshl_add_u32 v3, v5, 4, v3')
    e(f's_lshl_b32 s{sT0}, s{sQB}, 16'); e(f's_lshl_b32 s{sT1}, s{sWV}, 14'); e(f's_add_u32 s{sT0}, s{sT0}, s{sT1}')
    e(f's_lshl_b32 s{sPART}, s{sG}, 21'); e(f's_add_u32 s{sPART}, s{sPART}, s{sT0}')
    e(f's_lshl_b32 s{sT1}, s{sQB}, 17'); e(f's_lshl_b32 s{sWQO}, s{sG}, 10'); e(f's_add_u32 s{sT1}, s{sT1}, s{sWQO}')
    e(f's_mul_i32 s{sT2}, s{sQB}, {16*3584}'); e(f's_mul_i32 s{sW1O}, s{sG}, 448'); e(f's_add_u32 s{sT2}, s{sT2}, s{sW1O}')
    e(f's_mul_i32 s{sW2O}, s{sG}, {224*1024}')
    e(f's_mul_i32 s{sCNT}, s{sQB}, 7168'); e(f's_add_u32 s{sCNT}, s{sCNT}, s{sW2O}')
    e(f's_lshl_b32 s{sWOO}, s{sG}, 19')
    e(f's_lshl_b32 s{sIT}, s{sQB}, 14'); e(f's_add_u32 s{sFLAG}, s{sIT}, s{sWOO}')
    e(f's_lshl_b32 s{sIT}, s{sQB}, 11'); e(f's_add_u32 s{sIT}, s{sIT}, s{sWOO}')
    e(f's_mov_b32 s{sST}, s{sT2}'); e(f's_mov_b32 s63, s{sT1}')
    e(f's_and_b32 s{sROT}, s{sQB}, 7'); e(f's_lshl_b32 s{sROT}, s{sROT}, 7')
    e('v_mov_b32 v229, v8'); e('v_lshlrev_b32 v230, 6, v0'); e('v_lshlrev_b32 v228, 5, v0'); e('v_mov_b32 v215, v6'); e('v_lshlrev_b32 v214, 3, v0')
    WARM = {'q': (f'buffer_load_dword v212, v215, {srd(S_WQ)}, s63 offen', 'warm'),
            '1': (f'buffer_load_dword v208, v229, {srd(S_W1)}, s{sST} offen', 'warm'),
            '2': (f'buffer_load_dword v209, v228, {srd(S_W2)}, s{sCNT} offen', 'warm'),
            'k': (f'buffer_load_dword v210, v214, {srd(S_K)}, s{sIT} offen', 'warm'),
            'v': (f'buffer_load_dword v211, v214, {srd(S_V)}, s{sIT} offen', 'warm'),
            'o': (f'buffer_load_dword v213, v230, {srd(S_WO)}, s{sFLAG} offen', 'warm')}
    SRDS = {'q': (S_WQ, 70, 4194304), '1': (S_W1, 76, 1835008), '2': (S_W2, 78, 1835008), 'k': (S_K, 66, 4194304), 'v': (S_V, 68, 4194304), 'o': (S_WO, 72, 4194304)}
    e('s_waitcnt lgkmcnt(0)')
    stamp()
    for w in OPT['pre']:
        mk_srd(*SRDS.pop(w)); e(WARM[w])
    if OPT['spec']:
        def wl(sr, so):
            e(f'buffer_load_dword v207, v9, {srd(sr)}, s{so} offen', 'warm')
            if OPT['spec'] == 2: e(f'buffer_load_dword v208, v9, {srd(sr)}, s{so} offen offset:64', 'warm')
        for w in 'q12k': mk_srd(*SRDS.pop(w))
        A.trace_on = False; vm0 = list(A.vm)
        e(f's_cmp_lt_u32 s{sQB}, 16'); e('s_cbranch_scc1 L_w_q')
        e(f's_cmp_lt_u32 s{sQB}, 24'); e('s_cbranch_scc1 L_w_1')
        e('v_lshlrev_b32 v9, 7, v0')
        e(f's_cmp_lt_u32 s{sQB}, 31'); e('s_cbranch_scc1 L_w_2')
        wl(S_K, sWOO); e('s_branch L_w_done')
        e('L_w_2:')
        e(f's_sub_u32 s{sT3}, s{sQB}, 24'); e(f's_lshl_b32 s{sT3}, s{sT3}, 15'); e(f's_add_u32 s{sT3}, s{sT3}, s{sW2O}')
        wl(S_W2, sT3); e('s_branch L_w_done')
        e('L_w_1:')
        e('v_lshrrev_b32 v9, 2, v0'); e('v_mul_u32_u24 v9, 3584, v9'); e('v_and_b32 v10, 3, v0'); e('v_lshl_add_u32 v9, v10, 7, v9')
        e(f's_sub_u32 s{sT3}, s{sQB}, 16'); e(f's_mul_i32 s{sT3}, s{sT3}, {64*3584}'); e(f's_add_u32 s{sT3}, s{sT3}, s{sW1O}'); e(f's_and_b32 s{sT3}, s{sT3}, 0xffffff80')
        wl(S_W1, sT3); e('s_branch L_w_done')
        e('L_w_q:')
        A.trace_on = True; A.vm = vm0
        e('v_lshrrev_b32 v9, 3, v0'); e('v_lshlrev_b32 v9, 13, v9'); e('v_and_b32 v10, 7, v0'); e('v_lshl_add_u32 v9, v10, 7, v9')
        e(f's_lshl_b32 s{sT3}, s{sQB}, 18'); e(f's_add_u32 s{sT3}, s{sT3}, s{sWQO}')
        wl(S_WQ, sT3)
        e('L_w_done:')
    mk_srd(S_X, 64, 2097152)
    for jj in range(8):
        if OPT['rot']:
            e(f's_add_u32 s{sT3}, s{sROT}, {jj*128}'); e(f's_and_b32 s{sT3}, s{sT3}, 1023'); e(f's_add_u32 s{sT3}, s{sT3}, s{sT0}')
        for i in range(2):
            if OPT['rot']: e(f'buffer_load_dwordx4 {R("v", 128 + (jj*2+i)*4)}, v3, {srd(S_X)}, s{sT3} offen offset:{i*32}', f'x{jj}')
            else: e(f'buffer_load_dwordx4 {R("v", 128 + (jj*2+i)*4)}, v3, {srd(S_X)}, s{sT0} offen offset:{jj*128 + i*32}', f'x{jj}')
    for w in list(SRDS): mk_srd(*SRDS.pop(w))
    mk_srd(S_WS, 80, 64 << 20); mk_srd(S_OUT, 84, 2097152); mk_srd(S_DBG, 86, 256)
    for w in OPT['post']: e(WARM[w])
    e(f's_lshl_b32 s{sWV8K}, s{sWV}, 13')
    e(f's_add_u32 s{sRING}, s{sWV8K}, 65536')
    e(f's_lshl_b32 s{sT1}, s{sWV}, 8')
    e(f's_add_u32 s{sWQO}, s{sWQO}, s{sT1}')
    e(f's_lshl_b32 s{sT2}, s{sWV}, 7'); e(f's_add_u32 s{sW1O}, s{sW1O}, s{sT2}')
    e(f's_add_u32 s{S_W2}, s{S_W2}, s{sW2O}'); e(f's_addc_u32 s{S_W2+1}, s{S_W2+1}, 0'); e(f's_mov_b32 s{S_W2+2}, {224*1024}')
    e(f's_mul_i32 s{sW1C}, s{sQB}, 37'); e(f's_lshr_b32 s{sW1C}, s{sW1C}, 8'); e(f's_mul_i32 s{sW1C}, s{sW1C}, 7'); e(f's_sub_u32 s{sW1C}, s{sQB}, s{sW1C}')
    e(f's_lshl_b32 s{sW2O}, s{sW1C}, 15'); e(f's_add_u32 s{sW2O}, s{sW2O}, s{sT1}')
    e(f's_add_u32 s{sKV0}, s{sWOO}, s{sWV8K}')
    e(f's_add_u32 s{sWOO}, s{sWOO}, s{sT1}')
    e(f's_mov_b32 s{sKVO}, s{sKV0}'); e(f's_mov_b32 s{sREDO}, 0'); e(f's_mov_b32 s{sSENT}, 0')
    if OPT['rot']:
        e(f's_lshl_b32 s{sT2}, s{sROT}, 12'); e(f's_add_u32 s{sWQO}, s{sWQO}, s{sT2}')
        e(f's_mul_i32 s{sT2}, s{sROT}, 1792'); e(f's_add_u32 s{sW1O}, s{sW1O}, s{sT2}')
    e(f'v_lshrrev_b32 v6, 3, v{vLANE}')
    e(f'v_lshrrev_b32 v7, 4, v{vLANE}'); e('v_lshlrev_b32 v9, 1, v7')
    e(f'v_and_b32 v8, 7, v{vLANE}'); e('v_xor_b32 v8, v8, v9')
    e('v_lshlrev_b32 v9, 4, v8')
    e(f'v_lshl_add_u32 v{vOWQ[0]}, v6, 13, v9')
    e(f'v_lshl_add_u32 v{vO1K[0]}, v6, 10, v9')
    e('v_mul_u32_u24 v10, 3584, v6'); e(f'v_add_u32 v{vOW1[0]}, v10, v9')
    e(f's_cmp_eq_u32 s{sWV}, 3'); e(f's_cselect_b32 s{sT3}, 4, 8')
    e(f'v_cmp_le_u32 vcc, s{sT3}, v8')
    e('v_mov_b32 v10, 0x40000000')
    e('s_nop 0')
    e(f'v_cndmask_b32 v{vOW1[0]}, v{vOW1[0]}, v10, vcc')
    for i in range(1, 4):
        e(f'v_add_u32 v{vOWQ[i]}, {i*(8*8192-1024)}, v{vOWQ[0]}')
        e(f'v_add_u32 v{vOW1[i]}, {i*(8*3584-1024)}, v{vOW1[0]}')
        e(f'v_add_u32 v{vO1K[i]}, {i*(8*1024-1024)}, v{vO1K[0]}')
    e(f'v_bfe_u32 v6, v{vLANE}, 2, 2'); e(f'v_and_b32 v8, 3, v{vLANE}'); e(f'v_bfe_u32 v9, v{vLANE}, 3, 2')
    e('v_lshlrev_b32 v10, 3, v8'); e('v_lshl_add_u32 v10, v6, 7, v10'); e('v_lshl_add_u32 v10, v9, 5, v10')
    e('v_lshl_add_u32 v11, v7, 9, v10'); e(f'v_add_u32 v11, s{sRING}, v11')
    e('v_lshl_add_u32 v12, v7, 10, v10'); e(f'v_add_u32 v12, {LDS_V[0]}, v12')
    for i in range(4):
        e(f'v_xor_b32 v{vA[i]}, {i*32}, v11'); e(f'v_add_u32 v{vAH[i]}, 0x10000, v{vA[i]}'); e(f'v_xor_b32 v{vV[i]}, {i*32}, v12')
    e(f'v_lshlrev_b32 v{vLIN}, 4, v{vLANE}')
    e(f'v_lshrrev_b32 v12, 5, v{vLANE}'); e(f'v_lshl_add_u32 v13, v12, 1, v{vLANE}')
    for par in range(2):
        e(f'v_add_u32 v14, {4*par}, v13'); e('v_and_b32 v14, 15, v14'); e('v_lshlrev_b32 v14, 4, v14')
        e(f'v_lshl_add_u32 v{vB[par]}, v7, 8, v14')
    e(f'v_and_b32 v11, 15, v{vLANE}'); e('v_xor_b32 v13, v7, v11'); e('v_lshlrev_b32 v13, 4, v13')
    e('v_lshl_add_u32 v14, v11, 8, v13'); e('v_lshl_add_u32 v15, v7, 8, v13')
    for i in range(4):
        e(f'v_xor_b32 v{vK[i]}, {i*64}, v14'); e(f'v_xor_b32 v{vOK[i]}, {i*64}, v15')
    e(f'v_and_b32 v13, 7, v{vLANE}'); e('v_and_b32 v14, 2, v9'); e('v_xor_b32 v13, v13, v14'); e('v_lshlrev_b32 v13, 4, v13')
    e('v_lshl_add_u32 v13, v12, 7, v13'); e(f'v_lshl_add_u32 v{vOV[0]}, v9, 8, v13')
    e(f'v_xor_b32 v{vOV[1]}, 64, v{vOV[0]}')
    vW = vT
    e(f'v_lshl_add_u32 v13, v8, 1, v2'); e('v_and_b32 v13, 15, v13'); e('v_lshlrev_b32 v13, 4, v13')
    e('v_lshl_add_u32 v13, v4, 11, v13'); e('v_lshl_add_u32 v13, v5, 9, v13')
    e(f's_lshl_b32 s{sT1}, s{sWV}, 10'); e(f'v_add_u32 v{vW}, s{sT1}, v13')
    e('v_cmp_eq_u32 vcc, 0, v0'); e('v_mov_b32 v13, 0x40000000'); e(f's_lshl_b32 s{sT1}, s{sQB}, 3'); e(f'v_mov_b32 v14, s{sT1}')
    e(f'v_cndmask_b32 v{vSIG}, v13, v14, vcc')
    for i in range(16): e(f'v_accvgpr_write_b32 a{aO + 7*16 + i}, 0')
    units = []
    for ks in range(16):
        for h in range(2): units.append(dict(kind='wq', k0=32*ks, colb=128*h, acc=64*h, czero=ks == 0, bbuf=ks & 1, ks=ks))
    for ks in range(16): units.append(dict(kind='w1', k0=32*ks, colb=0, acc=128, czero=ks == 0, bbuf=ks & 1, ks=ks))
    for h, ks in [(h, ks) for ks in range(3) for h in range(2)] + [(h, ks) for h in range(2) for ks in range(3, 7)]:
        units.append(dict(kind='w2', k0=32*ks, colb=128*h, acc=64*h, czero=ks == 0, bbuf=ks & 1, ks=ks))
    for i, u in enumerate(units): u['slot'] = (i + 4) % 6; u['tag'] = f'u{i}'
    wun = []
    for h, ks in [(h, ks) for ks in range(8) for h in range(2)] + [(h, ks) for h in range(2) for ks in range(8, 16)]:
        wun.append(dict(kind='wo', k0=32*ks, colb=128*h, acc=64*h, czero=ks == 0, bbuf=ks & 1, ks=ks))
    for i, u in enumerate(wun):
        u['slot'] = i % 6; u['tag'] = f'w{i}'
        if u['ks'] >= 8: u['breg'] = (u['ks'] - 8) * 16
    c1, sm, nm, sq = vT + 1, vT + 2, vT + 6, vT + 8
    e(f'v_mov_b32 v{c1}, 0x3f803f80')
    for i in range(4): e(f'v_mov_b32 v{sm+i}, 0'); e(f'v_mov_b32 v{sq+i}, 0')
    if OPT.get('fine'): stamp()
    for jj in range(8):
        A.wait_vm([f'x{jj}'])
        if OPT.get('fine') and jj == 0: stamp()
        for i in range(jj*8, jj*8 + 8): e(f'v_dot2_f32_bf16 v{sm + (i & 3)}, v{128+i}, v{c1}, v{sm + (i & 3)}')
    stamp()
    for w in OPT['ln']: e(WARM[w])
    e('s_nop 2')
    dq = ['s_nop 0', 's_nop 0']
    for i in range(6):
        su, ops = unit_job(units[i])
        dq.append(lambda su=su, o=ops[0]: [e(x) for x in su + [o]]); dq += ops[1:]
    def quadsum(r):
        e(f'v_add_f32 v{r}, v{r}, v{r+1}'); e(f'v_add_f32 v{r+2}, v{r+2}, v{r+3}'); e(f'v_add_f32 v{r}, v{r}, v{r+2}')
        e('s_nop 1'); e(f'v_add_f32 v{r}, v{r}, v{r} quad_perm:[1,0,3,2] row_mask:0xf bank_mask:0xf')
        e('s_nop 1'); e(f'v_add_f32 v{r}, v{r}, v{r} quad_perm:[2,3,0,1] row_mask:0xf bank_mask:0xf')
        e(f'v_mul_f32 v{r}, {f2u(1/512):#x}, v{r}')
    def rbf(r): e(f'v_cvt_pk_bf16_f32 v{r}, v{r}, v{r}'); e(f'v_and_b32 v{r}, 0xffff0000, v{r}')
    quadsum(sm)
    e(f'v_sub_f32 v{nm}, 0, v{sm}'); rbf(nm); e(f'v_mov_b32 v{nm+1}, v{nm}')
    e(f'v_add_f32 v{sm}, v{sm}, v{nm}')
    for i in range(64):
        t = 2 * i
        e(f'v_lshlrev_b32 v{t}, 16, v{128+i}'); e(f'v_and_b32 v{t+1}, 0xffff0000, v{128+i}')
        e(f'v_pk_add_f32 v[{t}:{t+1}], v[{t}:{t+1}], v[{nm}:{nm+1}]')
        ac = sq + (i & 1) * 2
        e(f'v_pk_fma_f32 v[{ac}:{ac+1}], v[{t}:{t+1}], v[{t}:{t+1}], v[{ac}:{ac+1}]')
        if i % 4 == 0 and dq: e(dq.pop(0))
    if OPT.get('fine'): stamp()
    quadsum(sq)
    e(f'v_fma_f32 v{sq}, -v{sm}, v{sm}, v{sq}'); e(f'v_max_f32 v{sq}, 0, v{sq}'); rbf(sq)
    e(f'v_add_f32 v{sq}, {f2u(1e-5):#x}, v{sq}'); rbf(sq)
    e(f'v_sqrt_f32 v{sq}, v{sq}'); e(dq.pop(0)); rbf(sq)
    e(f'v_rcp_f32 v{sq}, v{sq}'); e(dq.pop(0))
    e(f'v_mul_f32 v{nm}, {f2u(CSCALE):#x}, v{sq}'); e(f'v_mov_b32 v{nm+1}, v{nm}')
    for jj in range(8):
        ob = 128 + jj * 8
        for i in range(2):
            for r in range(4):
                t = 2 * ((jj*2 + i)*4 + r)
                e(f'v_pk_mul_f32 v[{t}:{t+1}], v[{t}:{t+1}], v[{nm}:{nm+1}]')
                e(f'v_cvt_pk_bf16_f32 v{ob + (r >> 1)*4 + i*2 + (r & 1)}, v{t}, v{t+1}')
        e(f'ds_write_b128 v{vW}, {R("v", ob)} offset:{jj*8192}')
        e(f'ds_write_b128 v{vW}, {R("v", ob+4)} offset:{jj*8192+256}')
        if dq: e(dq.pop(0))
    assert not dq
    if OPT.get('fine'): stamp()
    for w in OPT['late']:
        if w != 'o': e(WARM[w])
    e(f's_lshl_b32 s{sST}, s{sQB}, 3'); e(f'v_mov_b32 v{vLINY}, v{vLIN}')
    A.wait_vm(['u0'])
    if OPT.get('fine'): stamp()
    for x in unit_reads(units[0], 0): e(x)
    e('s_waitcnt lgkmcnt(8)'); e('s_barrier')
    stamp()
    def bread1(ks): return [f'ds_read_b128 {R("a", aBF[ks & 1] + qt*4)}, v{vB[ks & 1]} offset:{(ks*4+qt)*1024}' for qt in range(4)]
    def bread2(ks, buf): return [f'ds_read_b128 {R("a", aBF[buf] + qt*4)}, v{vLIN} offset:{(ks*4+qt)*1024}' for qt in range(4)]
    for x in bread1(0): e(x)
    def breads_g1(i):
        if i < 32:
            b = bread1((i // 2 + 1) & 15)
            return b[:2] if i % 2 == 0 else b[2:]
        return bread1(i - 31) if i < 47 else []
    jobs = {i: unit_job(units[i + 6]) for i in range(56)}
    jobs[56] = kv_job('k', 0, 0, 0, 'k0'); jobs[57] = kv_job('k', 0, 1, 0, 'k0')
    jobs[58] = unit_job(wun[0]); jobs[59] = unit_job(wun[1])
    jobs[60] = store_job(WS_Y, 0); jobs[61] = store_job(WS_Y, 1)
    if OPT.get('fine'):
        for q in range(4):
            gemm_units(units, 8*q, 8*q + 8, breads_g1, jobs)
            if q < 3: stamp()
    else: gemm_units(units, 0, 32, breads_g1, jobs)
    stamp()
    qepi = []
    for s in range(4):
        for qt in range(4):
            a = (2*s*4 + qt) * 4
            qepi += pack_pair(0, s, qt)
            qepi += [f'v_permlane32_swap_b32 v{a}, v{a+2}', f'v_permlane32_swap_b32 v{a+1}, v{a+3}',
                     f'v_permlane16_swap_b32 v{a}, v{a+2}', f'v_permlane16_swap_b32 v{a+1}, v{a+3}']
            qepi += [f'v_accvgpr_write_b32 a{aQ + (qt*4+s)*4 + t}, v{a+t}' for t in range(4)]
    for m in range(2):
        e(f's_lshl_b32 s{sT1}, s{sWV}, 1'); e(f's_add_u32 s{sT1}, s{sT1}, {m}'); e(f's_sub_u32 s{sT2}, s{sT1}, s{sW1C}')
        e(f's_add_u32 s{sWQC}, s{sT2}, 7'); e(f's_min_u32 s{sT2}, s{sT2}, s{sWQC}'); e(f's_cmp_eq_u32 s{sT1}, 7'); e(f's_cselect_b32 s{sT2}, 7, s{sT2}')
        e(f's_lshl_b32 s{sT2}, s{sT2}, 12'); e(f'v_add_u32 v{vT+m}, s{sT2}, v{vLIN}')
    gemm_units(units, 32, 48, breads_g1, jobs, fill=qepi, barrier_at=41)
    assert not qepi
    stamp()
    for w in OPT['hw']: e(WARM[w])
    for m in range(2):
        for qt in range(4):
            a = 128 + (2*m*4 + qt) * 4
            if m == 1 and qt == 3: e('s_nop 1')
            for x in pack_pair(128, m, qt): e(x)
            for t in range(4): e(f'v_pk_max_i16 v{a+t}, v{a+t}, 0')
            e(f'ds_write_b128 v{vT+m}, {R("v", a)} offset:{qt*1024}')
    e('s_waitcnt lgkmcnt(0)'); e('s_barrier')
    for x in bread2(0, 0): e(x)
    stamp()
    def breads_f2(i):
        j = i - 48
        if j < 6:
            b = bread2(j // 2 + 1, (j // 2 + 1) & 1)
            return b[:2] if j % 2 == 0 else b[2:]
        return bread2(units[i + 1]['ks'], units[i + 1]['bbuf']) if j < 13 else []
    yepi = [x for p in range(2) for qt in range(4) for x in pack_pair(0, p, qt)]
    gemm_units(units, 48, 62, breads_f2, jobs, fill=yepi, fill_from=58)
    assert not yepi
    stamp()
    A.wait_vm(['k0'])
    e('s_barrier')
    def kreads(slot, kt, buf): return [f'ds_read_b128 {R("a", aKF[buf] + s*4)}, v{vK[s]} offset:{LDS_K[slot] + kt*4096}' for s in range(4)]
    def qk(kbuf, sbuf, czero=False):
        return [mfma('v', vS + sbuf*16 + qt*4, 'a', aKF[kbuf] + s*4, 'a', aQ + (qt*4+s)*4, None if s else ('0' if czero else R('v', vNEG + qt*4)))
                for qt in range(4) for s in range(4)]
    def vreads(slot, dt, buf):
        return [f'ds_read_b64_tr_b16 {R("a", aVF[buf] + ks*4 + h*2, 2)}, v{vV[dt & 3]} offset:{slot*32768 + ks*8192 + h*4096 + (dt >> 2)*512}'
                for ks in range(4) for h in range(2)]
    def pv(pbuf, dt, czero=False):
        return [mfma('a', aO + (dt*4+qt)*4, 'a', aVF[dt & 1] + ks*4, 'v', pbuf*64 + (ks*4+qt)*4, '0' if czero and ks == 0 else None)
                for qt in range(4) for ks in range(4)]
    RSL = [(qi, qt, ks) for qi, qt in enumerate(RS) for ks in range(4)]
    def rsum(pbuf, dt):
        sel = RSL if dt is None else RSL[dt*len(RSL)//8:(dt+1)*len(RSL)//8]
        return [mfma('v', vLA + qi*4, 'v', vONE, 'v', pbuf*64 + (ks*4+qt)*4) for qi, qt, ks in sel]
    def sm_ops(pbuf, kt):
        sb = vS + (kt & 1) * 16
        ex = [f'v_exp_f32 v{sb+i}, v{sb+i}' for i in range(16)]
        ad = [f'v_add_f32 v{vL[i >> 2]}, v{vL[i >> 2]}, v{sb+i}' if (i >> 2) not in RS else None for i in range(16)]
        cv = [f'v_cvt_pk_bf16_f32 v{pbuf*64 + ((kt >> 1)*4 + (m >> 1))*4 + (kt & 1)*2 + (m & 1)}, v{sb+2*m}, v{sb+2*m+1}' for m in range(8)]
        return ex, ad, cv
    mx = [vT, vT + 1, vT + 2, vT + 3]
    def neg_from_max():
        return xlane(mx, vT + 4, 'v_max_f32') + [f'v_sub_f32 v{vNEG + qt*4 + r}, 0, v{mx[qt]}' for qt in range(4) for r in range(4)]
    init = [f'v_mov_b32 v{vL[qt]}, 0' for qt in range(4)] + [f'v_mov_b32 v{vLA+i}, 0' for i in range(4*len(RS))]
    for x in kreads(0, 0, 0): e(x)
    job_now(kv_job('k', 1, 0, 32768, 'kv'))
    e(f'v_and_b32 v{vONE}, 15, v{vLANE}'); e(f'v_cmp_eq_u32 vcc, 0, v{vONE}'); e(f'v_mov_b32 v{vONE+1}, 0x3f803f80'); e('s_nop 0')
    e(f'v_cndmask_b32 v{vONE}, 0, v{vONE+1}, vcc')
    for i in range(1, 4): e(f'v_mov_b32 v{vONE+i}, v{vONE}')
    yepi = [x for p in range(2, 4) for qt in range(4) for x in pack_pair(0, p, qt)]
    emit_gaps(qk(0, 0, True), {g: yepi[2*g:2*g+2] for g in range(16)})
    job_now(kv_job('k', 1, 1, 32768, 'kv'))
    for qt in range(4):
        a = vS + qt*4
        e(f'v_max3_f32 v{mx[qt]}, v{a}, v{a+1}, v{a+2}'); e(f'v_max_f32 v{mx[qt]}, v{mx[qt]}, v{a+3}')
    if OPT['force_redo']:
        for qt in range(4): e(f'v_add_f32 v{mx[qt]}, {f2u(-64.0):#x}, v{mx[qt]}')
    for x in neg_from_max(): e(x)
    fjobs = [kv_job('v', 0, 0, 0, 'kv'), kv_job('v', 0, 1, 0, 'kv'), store_job(WS_Y, 2, vLINY), store_job(WS_Y, 3, vLINY)]
    stamp()
    e('L_attn:')
    carry = []
    def dense_sm(plan, g0, sm):
        ex, ad, cv = sm
        for i in range(16):
            p = plan.setdefault(g0 + i, [])
            if i == 0:
                p.extend(carry); carry.clear()
            else:
                if ad[i-1]: p.append(ad[i-1])
                if i % 2 == 0: p.append(cv[i//2 - 1])
            p.append(ex[i])
        carry.extend([x for x in (cv[7], ad[15]) if x])
    PAT = OPT['pat']
    def steady_sm(plan, sm):
        ex, ad, cv = sm
        avail = [(0, x) for x in carry]; carry.clear()
        for i in range(16):
            if i & 1: avail.append((2*i + 2, cv[i >> 1]))
            if ad[i]: avail.append((2*i + 2, ad[i]))
        for k, ty in enumerate(PAT):
            g = 2 * k
            p = plan.setdefault(g, [])
            for _ in range({'K': 1, 'V': 1, 'W': 2, 'X': 3, 'D': 0}[ty]):
                cand = [j for j, (t, x) in enumerate(avail) if t <= g]
                if not cand: break
                p.append(avail.pop(cand[0])[1])
            if k < 16: plan.setdefault(g + 1, []).append(ex[k])
        rest = [x for t, x in avail]
        rest.sort(key=lambda x: 0 if 'cvt' in x else 1)
        carry.extend(rest)
    for j in range(7):
        plan = {g: [] for g in range(16)}
        if j: dense_sm(plan, 0, sm_ops(0, j - 1))
        else:
            for g, x in enumerate(init): plan[g % 16].append(x)
        for g, x in zip((0, 2, 4, 6), kreads(0, j + 1, (j + 1) & 1)): plan[g].insert(0, x)
        if j < 2:
            for g, x in zip((1, 3), fjobs[j][0]): plan[g].insert(0, x)
            for g, x in zip((5, 9, 11, 13), fjobs[j][1]): plan[g].insert(0, x)
        elif j < 6:
            jb = fjobs[2 + (j - 2) // 2]
            if j % 2 == 0: plan[1].insert(0, jb[0][0])
            for g, x in zip((5, 13), jb[1][(j % 2)*2:(j % 2)*2 + 2]): plan[g].insert(0, x)
        emit_gaps(qk(j & 1, j & 1), plan, qk((j + 1) & 1, 0)[3])
    def segment(b):
        e({-1: 's_waitcnt vmcnt(8) lgkmcnt(0)', 0: 's_waitcnt vmcnt(3) lgkmcnt(0)', 1: 's_waitcnt vmcnt(3) lgkmcnt(0)'}[b]); e('s_barrier')
        xo = []
        if b >= 0:
            xo = [(f'buffer_store_dwordx4 a[240:243], v{vLIN}, {srd(S_WS)}, s{sT1} offen sc1', 'x'),
                  (f'buffer_store_dwordx4 a[240:243], v{vLIN}, {srd(S_WS)}, s{sT1} offen offset:1024 sc1', 'x'),
                  (f'buffer_atomic_add v{vT+9}, v{vSIG}, {srd(S_DBG)}, s{sT2} offen sc1', 'x') if b == 0 else
                  (f'buffer_load_dword v{vT+8}, off, {srd(S_DBG)}, s{sST} sc1', 'x')]
        dj = [kv_job('k', (b+1) & 1, 0, 65536, 'kv'), kv_job('k', (b+1) & 1, 1, 65536, 'kv'), kv_job('v', b & 1, 0, 32768, 'kv'), kv_job('v', b & 1, 1, 32768, 'kv')]
        dn = 0
        for per in range(8):
            plan = {g: [] for g in range(36)}
            if per == 0 and b < 0:
                first, ex_m = qk(1, 1), []
                dense_sm(plan, 0, sm_ops(0, 6)); dense_sm(plan, 16, sm_ops(0, 7))
            elif per == 0:
                first, ex_m = pv(b & 1, 7), rsum(b & 1, 7)
                steady_sm(plan, sm_ops((b+1) & 1, 7))
            else:
                first, ex_m = pv((b+1) & 1, per - 1, b < 0), rsum((b+1) & 1, per - 1)
                steady_sm(plan, sm_ops(b & 1, per - 1))
            mf = first + qk(0, per & 1) + ex_m
            kr, vr = kreads(b & 1, per, 0), vreads((b+1) & 1, per, per & 1)
            for k, ty in enumerate(PAT):
                g = 2 * k
                if ty == 'K': plan[g].insert(0, kr.pop(0))
                elif ty == 'V': plan[g].insert(0, vr.pop(0))
                elif ty == 'D' and dn < 16 and g < len(mf) and not OPT['nodma']:
                    if dn % 4 == 0:
                        plan[g-3].insert(0, dj[dn//4][0][0]); plan[g-1].insert(0, dj[dn//4][0][1])
                    plan[g].insert(0, dj[dn//4][1][dn % 4]); dn += 1
                elif ty == 'D' and xo: plan[g].insert(0, xo.pop(0))
            assert not kr and not vr and all(not plan[g] for g in range(len(mf), 36))
            if b < 0 and per == 6:
                plan[12] += [f'v_mov_b32 v{vT+9}, 1', 'v_accvgpr_write_b32 a240, -1']; plan[22] += ['v_accvgpr_write_b32 a241, -1', 'v_accvgpr_write_b32 a242, -1']
                plan[32] += ['v_accvgpr_write_b32 a243, -1']
            if b >= 0 and per == 4:
                plan[13].insert(0, f's_add_u32 s{sT1}, s{sPART}, s{sSENT}')
                plan[17].insert(0, f's_cmp_lt_u32 s{sSENT}, 16384'); plan[19].insert(0, f's_cselect_b32 s{sT1}, s{sT1}, {HUGE}')
                plan[23].insert(0, f's_add_u32 s{sSENT}, s{sSENT}, 2048')
                if b == 0: plan[25].insert(0, f's_cmp_eq_u32 s{sIT}, 2'); plan[27].insert(0, f's_cselect_b32 s{sT2}, 0, {HUGE}')
            if b < 0 and per == 0 and 'o' in OPT['late']: plan[1].insert(0, (WARM['o'][0].replace('v213', 'v206'), 'warm'))
            if OPT['coarse']:
                def wk(): e(f"s_waitcnt lgkmcnt({A.lg_need({('a', aKF[0] + r) for r in range(16)})})")
                wk.__name__ = 'war'
                plan[15].insert(0, wk)
                if per < 7: plan[31].insert(0, 's_waitcnt lgkmcnt(0)')
            if per == 7: plan[27].insert(0, f's_add_u32 s{sKVO}, s{sKVO}, 32768')
            if per == 7 and b == 1:
                plan[25].insert(0, f's_sub_u32 s{sIT}, s{sIT}, 1'); plan[29].insert(0, f's_cmp_lg_u32 s{sIT}, 0')
            if b >= 0 and OPT['abl']:
                def drop(x):
                    t = x[0] if isinstance(x, tuple) else x
                    if not isinstance(t, str): return 'l' in OPT['abl']
                    return (('e' in OPT['abl'] and t.startswith('v_exp')) or ('c' in OPT['abl'] and t.startswith('v_cvt')) or ('a' in OPT['abl'] and t.startswith('v_add'))
                            or ('l' in OPT['abl'] and t.startswith('ds_read')) or ('d' in OPT['abl'] and t.endswith('lds')) or ('k' in OPT['abl'] and t.startswith('ds_read_b64')))
                for g in plan: plan[g] = [x for x in plan[g] if not drop(x)]
            emit_gaps(mf, plan, pv((b+1) & 1, per)[0] if per < 7 else None)
        assert dn == 16 or OPT['nodma']
    segment(-1)
    stamp()
    e(f's_mov_b32 s{sIT}, 7'); e('s_waitcnt vmcnt(0)')
    A.raw('.p2align 6')
    e('L_loop:')
    mk = A.mark()
    c0 = list(carry)
    segment(0); segment(1)
    assert carry == c0, (carry, c0)
    e('s_cbranch_scc1 L_loop')
    A.repeat_trace(mk)
    stamp()
    e('s_waitcnt vmcnt(0) lgkmcnt(0)')
    e(f'v_readfirstlane_b32 s{sT2}, v{vT+8}')
    vXO, vPO = vT + 10, vT + 11
    sPC, sXO = sWQO, sW1O
    e(f's_lshl_b32 s{sPC}, s{sQB}, 16'); e(f's_lshl_b32 s{sT1}, s{sG}, 7'); e(f's_add_u32 s{sXO}, s{sPC}, s{sT1}')
    e(f's_lshl_b32 s{sT1}, s{sG}, 13'); e(f's_add_u32 s{sPC}, s{sPC}, s{sT1}'); e(f's_lshl_b32 s{sT1}, s{sWV}, 10'); e(f's_add_u32 s{sPC}, s{sPC}, s{sT1}')
    e(f'v_add_u32 v{vPO}, 4096, v{vLIN}')
    e(f's_cmp_lt_u32 s{sT2}, 8'); e('s_cbranch_scc1 L_ywait')
    e('L_yok:')
    e('s_barrier')
    def part_loads(base, dst, g0, tag):
        su = [f's_add_u32 s{sT0}, s{sPC}, {base + (g0 << 21)}', f's_add_u32 s{sT3}, s{sPC}, {base + ((g0 + 1) << 21)}']
        ops = [(f'buffer_load_dwordx4 {R("v", dst + ((g0 + (j >> 1))*2 + (j & 1))*4)}, v{vPO if j & 1 else vLIN}, {srd(S_WS)}, s{sT3 if j >> 1 else sT0} offen sc1', f'{tag}{g0 + (j >> 1)}') for j in range(4)]
        return su, ops
    plan = {g: [] for g in range(40)}
    dense_sm(plan, 0, sm_ops(1, 7))
    for g, x in zip(range(0, 16, 2), vreads(1, 0, 0)): plan[g].insert(0, x)
    mf = pv(0, 7) + rsum(0, 7)
    plan[len(mf) - 1] += (['s_nop 0'] if len(mf) == 16 else []) + carry + ['s_nop 0']; carry.clear()
    emit_gaps(mf + rsum(1, None), plan)
    fin = ['s_nop 3'] + [f'v_mov_b32 v{vL[qt]}, v{vLA + qi*4}' for qi, qt in enumerate(RS)]
    fin += xlane(vL, vT + 4, 'v_add_f32')
    fin += [f'v_mov_b32 v{vT}, {f2u(2.0**30):#x}', f'v_and_b32 v{vT+1}, 3, v{vLANE}', f'v_lshlrev_b32 v{vT+1}, 14, v{vT+1}',
            f's_lshl_b32 s{sT2}, s{sWV}, 2', f'v_add_u32 v{vT+1}, s{sT2}, v{vT+1}', f's_lshl_b32 s{sT2}, s{sWV}, 14', f'v_add_u32 v{vT+2}, s{sT2}, v{vLIN}',
            f'v_mov_b32 v{vT+3}, s{sT2}']
    fin += [f'v_cmp_nlt_f32 s[{84+2*qt}:{85+2*qt}], v{vL[qt]}, v{vT}' for qt in range(3)] + [f'v_cmp_nlt_f32 vcc, v{vL[3]}, v{vT}']
    fin += [f'v_rcp_f32 v{vL[qt]}, v{vL[qt]}' for qt in range(4)]
    fin += [lambda: [e(x) for x in ('s_or_b64 s[84:85], s[84:85], s[86:87]', 's_or_b64 s[88:89], s[88:89], vcc', 's_or_b64 s[84:85], s[84:85], s[88:89]',
                                    f's_cselect_b32 s{sT1}, 1, 0', f'v_mov_b32 v{vT}, s{sT1}', f'ds_write_b32 v{vT+1}, v{vT} offset:15360')]]
    def oepi(s):
        out = []
        for qt in range(4):
            tb = ((s*4 + qt) & 7) * 8
            out += [f'v_accvgpr_read_b32 v{tb + t*4 + r}, a{aO + ((2*s+t)*4 + qt)*4 + r}' for t in range(2) for r in range(4)]
            out += [f'v_mul_f32 v{tb+r}, v{vL[qt]}, v{tb+r}' for r in range(8)]
            out += [f'v_cvt_pk_bf16_f32 v{tb+r}, v{tb+2*r}, v{tb+2*r+1}' for r in range(4)]
            out.append(f'ds_write_b128 v{vT+2}, {R("v", tb)} offset:{(s*4+qt)*1024}')
        return out
    pend = fin
    for dt in range(8):
        plan = {g: [] for g in range(16)}
        if dt in (2, 4, 6): pend = pend + oepi(dt // 2 - 1)
        vm = []
        if dt < 7:
            for g, x in zip(range(0, 16, 2), vreads(1, dt + 1, (dt + 1) & 1)): plan[g].append(x)
        if dt in (5, 6): vm = [unit_job(wun[dt - 3])]
        if dt in (0, 1, 2, 3): vm = [part_loads(WS_Y, 128, 2*dt, 'y')]
        if dt == 7:
            e('s_waitcnt lgkmcnt(0)'); e('s_barrier')
            plan[0].append(f'ds_read_b128 {R("v", vT+4)}, v{vT+3} offset:15360')
            vm = [unit_job(wun[4]), unit_job(wun[5])]
        vg = [3, 7, 11, 15] if len(vm) == 1 else [2, 3, 4, 5, 8, 9, 10, 11]
        for jn, jb in enumerate(vm):
            g0 = vg[jn*4]
            plan[g0-2].insert(0, jb[0][0]); plan[g0-1].insert(0, jb[0][1])
            for g, x in zip(vg[jn*4:jn*4+4], jb[1]): plan[g].insert(0, x)
        share = (len(pend) + 1) // 2 if dt % 2 == 0 else len(pend)
        now, pend = pend[:share], pend[share:]
        for g in range(16):
            k = len(now) // (16 - g) + (1 if len(now) % (16 - g) and g % 2 else 0)
            plan[g] += now[:k]; now = now[k:]
        assert not now
        emit_gaps(pv(1, dt), plan, pv(1, dt + 1)[0] if dt < 6 else None)
    stamp()
    e(f'v_or_b32 v{vT+4}, v{vT+4}, v{vT+5}'); e(f'v_or3_b32 v{vT+4}, v{vT+4}, v{vT+6}, v{vT+7}')
    for x in unit_reads(wun[0], 0): e(x)
    e(f'v_readfirstlane_b32 s{sT1}, v{vT+4}')
    for x in oepi(3): e(x)
    e(f's_andn2_b32 s{sT1}, s{sT1}, s{sREDO}') if not OPT['abl'] else e(f's_and_b32 s{sT1}, s{sT1}, 0')
    e('s_waitcnt lgkmcnt(0)'); e('s_barrier')
    e('s_cbranch_scc1 L_redo')
    for x in bread2(0, 0): e(x)
    stamp()
    late_b = [f'ds_read_b128 {R("a", (ks - 8)*16 + qt*4)}, v{vLIN} offset:{(ks*4+qt)*1024}' for ks in range(8, 16) for qt in range(4)]
    def breads_o(i):
        out = []
        if i < 14:
            b = bread2(i // 2 + 1, (i // 2 + 1) & 1)
            out = b[:2] if i % 2 == 0 else b[2:]
        while len(out) < 3 and late_b: out.append(late_b.pop(0))
        return out
    SEL, G, X, TT = 192, 200, 247, vT
    X = 248
    fl = [f'v_and_b32 v{TT}, 1, v{vLANE}', f'v_lshlrev_b32 v{TT}, 4, v{TT}', f'v_mov_b32 v{TT+1}, 0x3f80', f'v_lshlrev_b32 v{TT}, v{TT}, v{TT+1}',
          f'v_bfe_u32 v{TT+1}, v{vLANE}, 1, 1', f'v_bfe_u32 v{TT+2}, v{vLANE}, 3, 1', f'v_lshl_add_u32 v{TT+1}, v{TT+2}, 1, v{TT+1}',
          f'v_bfe_u32 v{TT+2}, v{vLANE}, 4, 1', f'v_lshl_add_u32 v{TT+1}, v{TT+2}, 2, v{TT+1}',
          f'v_bfe_u32 v{TT+2}, v{vLANE}, 2, 1', f'v_lshrrev_b32 v{TT+3}, 5, v{vLANE}', f'v_xor_b32 v{TT+2}, v{TT+2}, v{TT+3}',
          f'v_lshl_add_u32 v{TT+1}, v{TT+2}, 3, v{TT+1}']
    for r in range(8): fl += [f'v_cmp_eq_u32 s[{64+2*r}:{65+2*r}], {r}, v{TT+1}']
    for r in range(8): fl += [f'v_cndmask_b32 v{SEL+r}, 0, v{TT}, s[{64+2*r}:{65+2*r}]']
    fl += [f'v_and_b32 v{vXO}, 15, v{vLANE}', f'v_lshlrev_b32 v{vXO}, 10, v{vXO}', f'v_and_b32 v{TT+4}, 48, v{vLANE}', f'v_add_u32 v{vXO}, v{vXO}, v{TT+4}',
           f's_lshl_b32 s{sT1}, s{sWV}, 14', f'v_add_u32 v{vXO}, s{sT1}, v{vXO}']
    def summ(src, acc, g):
        return [mfma('v', acc + pp*8 + hl*4, 'v', SEL + hl*4, 'v', src[g] + pp*4, '0' if g == 0 else None) for pp in range(2) for hl in range(2)]
    def rnd(lo, n, t):
        out = []
        for r in range(0, n, 2):
            tt = t + (r >> 1) % 4
            out += [f'v_cvt_pk_bf16_f32 v{tt}, v{lo+r}, v{lo+r+1}', f'v_lshlrev_b32 v{lo+r}, 16, v{tt}', f'v_and_b32 v{lo+r+1}, 0xffff0000, v{tt}']
        return out
    E = 128
    silu = [f'v_mul_f32 v{G+r}, {f2u(1/CSCALE):#x}, v{G+r}' for r in range(16)] + rnd(G, 16, TT)
    silu += [f'v_mul_f32 v{E+r}, {f2u(-1.4426950408889634):#x}, v{G+r}' for r in range(16)] + [f'v_exp_f32 v{E+r}, v{E+r}' for r in range(16)]
    silu += [f'v_add_f32 v{E+r}, 1.0, v{E+r}' for r in range(16)] + [f'v_rcp_f32 v{E+r}, v{E+r}' for r in range(16)]
    silu += [f'v_mul_f32 v{G+r}, v{G+r}, v{E+r}' for r in range(16)] + rnd(G, 16, TT)
    vST = [vT + 5, vT + 6]
    fl += [lambda: [e(x) for j in range(1, 8) for x in (f's_add_u32 s{80+j}, s{sG}, {j}', f's_and_b32 s{80+j}, s{80+j}, 7', f's_lshl_b32 s{80+j}, s{80+j}, 21', f's_add_u32 s{80+j}, s{80+j}, s{sPC}')]]
    fl += [lambda: [e(x) for h in range(2) for x in (f's_lshl_b32 s{sT1}, s{sWV}, 1', f's_add_u32 s{sT1}, s{sT1}, {h}', f's_cmp_eq_u32 s{sT1}, s{sG}',
                                                     f's_cselect_b32 s{sT1}, {HUGE}, 0', f'v_add_u32 v{vST[h]}, s{sT1}, v{vLIN}')]]
    fl += [lambda: [e(x) for x in (f's_lshr_b32 s{sT1}, s{sG}, 1', f's_lshl_b32 s{sT1}, s{sT1}, 13', f's_add_u32 s{sT1}, s{sT1}, 98304', f'v_add_u32 v{vT+7}, s{sT1}, v{vLIN}',
                                   f's_lshl_b32 s{sT2}, s{sWV}, 10', f'v_add_u32 v{vT+8}, s{sT2}, v{vT+7}')]]
    jobs = {i: unit_job(wun[i + 6]) for i in range(26)}
    XR, XU = 246, 144
    PGS = [16, 24, 48, 56, 80, 88, 112, 120]
    def gl(j, h): return (f'buffer_load_dwordx4 {R("v", PGS[j] + h*4)}, v{vPO if h else vLIN}, {srd(S_WS)}, s{80+j} offen sc1', f's{j}')
    jobs[26] = (['s_nop 0'], [(f'buffer_load_dwordx4 {R("v", XR)}, v{vXO}, {srd(S_X)}, s{sXO} offen', 'xr'), (f'buffer_load_dwordx4 {R("v", XR+4)}, v{vXO}, {srd(S_X)}, s{sXO} offen offset:64', 'xr')])
    gemm_units(wun, 0, 24, breads_o, jobs, fill=fl)
    assert not fl and not late_b
    def st(p, qt, vo): return (f'buffer_store_dwordx4 {R("v", (2*p*4 + qt)*4)}, v{vo}, {srd(S_WS)}, s{sT2} offen' + (f' offset:{qt*1024}' if qt else '') + ' sc1', 'st')
    for i in range(24, 32):
        p, qt = divmod(i - 24, 4)
        fi = pack_pair(0, p, qt) + ([f's_add_u32 s{sT2}, s{sPART}, {p*4096}'] if qt == 0 else [])
        gemm_units(wun, i, i + 1, breads_o, jobs, fill=fi, late=st(p, qt, vST[0]))
        assert not fi
    stamp()
    for p in range(2, 4):
        e(f's_add_u32 s{sT2}, s{sPART}, {p*4096}')
        for qt in range(4):
            if p == 3 and qt == 3: e('s_nop 1')
            e(pack_pair(0, p, qt)); e(st(p, qt, vST[1]))
    ys = [summ([128 + g*8 for g in range(8)], G, g) for g in range(8)]
    for j in range(1, 8):
        e(gl(j, 0)); e(ys[j-1][:2]); e(gl(j, 1)); e(ys[j-1][2:])
    e(ys[7])
    e(f's_lshr_b32 s{sT1}, s{sG}, 1'); e(f's_cmp_lg_u32 s{sT1}, s{sWV}'); e('s_cbranch_scc1 L_nown')
    e(f's_bitcmp1_b32 s{sG}, 0'); e('s_cbranch_scc1 L_own1')
    A.trace_on = False
    for pp in range(2):
        for qt in range(4): e(f'ds_write_b128 v{vT+7}, {R("v", (2*pp*4 + qt)*4)} offset:{pp*4096 + qt*1024}')
    e('s_branch L_nown')
    e('L_own1:')
    for pp in range(2):
        for qt in range(4): e(f'ds_write_b128 v{vT+7}, {R("v", (2*(pp+2)*4 + qt)*4)} offset:{pp*4096 + qt*1024}')
    A.trace_on = True
    e('L_nown:')
    stamp()
    e(f's_mov_b32 s{sCNT}, {SPIN if not OPT["abl"] else 20}')
    e('s_nop 4')
    e(silu)
    A.wait_vm(['xr'])
    for r in range(8): e(f'v_lshlrev_b32 v{XU+2*r}, 16, v{XR+r}'); e(f'v_and_b32 v{XU+1+2*r}, 0xffff0000, v{XR+r}')
    e('s_waitcnt lgkmcnt(0)'); e('s_barrier')
    e(f'ds_read_b128 {R("v", PGS[0])}, v{vT+8}'); e(f'ds_read_b128 {R("v", PGS[0]+4)}, v{vT+8} offset:4096')
    e('s_waitcnt vmcnt(0)')
    e('L_scheck:')
    for j in range(1, 8):
        b, t = PGS[j], TT + (j & 1)
        e(f'v_max3_u32 v{t}, v{b}, v{b+1}, v{b+2}'); e(f'v_max3_u32 v{t}, v{t}, v{b+3}, v{b+4}'); e(f'v_max3_u32 v{t}, v{t}, v{b+5}, v{b+6}'); e(f'v_max_u32 v{t}, v{t}, v{b+7}')
        e(f'v_cmp_eq_u32 s[{64+2*j}:{65+2*j}], -1, v{t}')
    e('s_or_b64 vcc, s[66:67], s[68:69]')
    for j in range(3, 8): e(f's_or_b64 vcc, vcc, s[{64+2*j}:{65+2*j}]')
    e('s_cbranch_scc1 L_sagain')
    e('L_sok:')
    stamp()
    SA = 160
    def fin_ops(pp):
        lo = SA + pp*8
        out = rnd(lo, 8, TT) + [f'v_mul_f32 v{lo+r}, v{lo+r}, v{G+pp*8+r}' for r in range(8)] + rnd(lo, 8, TT)
        out += [f'v_add_f32 v{lo+r}, v{lo+r}, v{XU+pp*8+r}' for r in range(8)]
        out += [f'v_cvt_pk_bf16_f32 v{176+pp*4+r//2}, v{lo+r}, v{lo+r+1}' for r in range(0, 8, 2)]
        out += [f'buffer_store_dwordx4 {R("v", 176+pp*4)}, v{vXO}, {srd(S_OUT)}, s{sXO} offen' + (' offset:64' if pp else '')]
        return out
    ch = [[summ(PGS, SA, g)[c] for g in range(8)] for c in range(4)]
    e(ch[0] + ch[1])
    f0 = fin_ops(0)
    emit_gaps(ch[2] + ch[3], {g: (f0[2*g-6:2*g-4] if g >= 3 else []) for g in range(16)})
    e(f0[26:]); e(fin_ops(1))
    def again():
        e('L_sagain:')
        e(f's_sub_u32 s{sCNT}, s{sCNT}, 1'); e(f's_cmp_eq_u32 s{sCNT}, 0'); e('s_cbranch_scc1 L_sok')
        if OPT['slp']: e(f's_sleep {OPT["slp"]}')
        for j in range(1, 8):
            e(f's_mov_b64 exec, s[{64+2*j}:{65+2*j}]'); e(gl(j, 0)); e(gl(j, 1))
        e('s_mov_b64 exec, -1')
        e('s_waitcnt vmcnt(0)')
        e('s_branch L_scheck')
    if OPT['stamps']:
        e('s_waitcnt vmcnt(0)')
        stamp()
        e(f'v_lshlrev_b32 v1, 2, v{vLANE}'); e(f's_lshl_b32 s{sT1}, s2, 10'); e(f's_lshl_b32 s{sT2}, s{sWV}, 8'); e(f's_add_u32 s{sT1}, s{sT1}, s{sT2}')
        e(f's_add_u32 s{sT1}, s{sT1}, {WS_STAMP}')
        e('s_memrealtime s[90:91]'); e('s_waitcnt lgkmcnt(0)'); e(f'v_writelane_b32 v{vSTAMP}, s90, 63'); e(f'v_writelane_b32 v{vSTAMP}, s92, 62')
        e(f'buffer_store_dword v{vSTAMP}, v1, {srd(S_WS)}, s{sT1} offen')
        if OPT.get('dbgout'):
            e('s_load_dwordx2 s[84:85], s[0:1], 72'); e('s_waitcnt lgkmcnt(0)')
            mk_srd(64, 84, 64)
            e(f'v_subrev_u32 v{vSTAMP}, s92, v{vSTAMP}'); e('v_subrev_u32 v1, 124, v1')
            e(f's_lshl_b32 s{sT1}, s2, 2'); e(f's_add_u32 s{sT1}, s{sT1}, s{sWV}'); e(f's_cmp_lg_u32 s{sT1}, {OPT["dbgout"]}'); e('s_cbranch_scc1 L_main_end')
            e(f'buffer_store_dword v{vSTAMP}, v1, s[64:67], 0 offen')
    e('L_main_end:')
    e('s_endpgm')
    again()
    e('L_redo:')
    e(f's_mov_b32 s{sREDO}, 1')
    e(f's_mov_b32 s{sKVO}, s{sKV0}')
    e(f's_mov_b32 s{sCNT}, 16')
    for qt in range(4): e(f'v_mov_b32 v{mx[qt]}, 0xff800000')
    e('L_redo_blk:')
    job_now(kv_job('k', 0, 0, 0, 'kv')); job_now(kv_job('k', 0, 1, 0, 'kv'))
    e('s_waitcnt vmcnt(0)'); e('s_barrier')
    for kt in range(8):
        for x in kreads(0, kt, 0): e(x)
        for x in qk(0, 0, True): e(x)
        e('s_nop 7')
        for qt in range(4):
            a = vS + qt*4
            e(f'v_max3_f32 v{mx[qt]}, v{mx[qt]}, v{a}, v{a+1}'); e(f'v_max3_f32 v{mx[qt]}, v{mx[qt]}, v{a+2}, v{a+3}')
    e('s_barrier')
    e(f's_add_u32 s{sKVO}, s{sKVO}, 32768')
    e(f's_sub_u32 s{sCNT}, s{sCNT}, 1'); e(f's_cmp_lg_u32 s{sCNT}, 0'); e('s_cbranch_scc1 L_redo_blk')
    for x in neg_from_max(): e(x)
    for i in range(16): e(f'v_accvgpr_write_b32 a{aO + 7*16 + i}, 0')
    e(f's_mov_b32 s{sKVO}, s{sKV0}')
    for hi in range(2): job_now(kv_job('k', 0, hi, 0, 'kv')); job_now(kv_job('k', 1, hi, 32768, 'kv'))
    e('s_waitcnt vmcnt(0)'); e('s_barrier')
    for x in kreads(0, 0, 0): e(x)
    e('s_waitcnt lgkmcnt(0)')
    e(f'v_mov_b32 v{vSIG}, {HUGE}'); e(f'v_mov_b32 v{vLINY}, {HUGE}')
    e('s_branch L_attn')
    e('L_ywait:')
    e(f's_mov_b32 s{sCNT}, {SPIN}')
    e('L_ywait_loop:')
    e('s_sleep 2')
    e(f'buffer_load_dword v{vT+8}, off, {srd(S_DBG)}, s{sST} sc1')
    e('s_waitcnt vmcnt(0)')
    e(f'v_readfirstlane_b32 s{sT2}, v{vT+8}')
    e(f's_sub_u32 s{sCNT}, s{sCNT}, 1')
    e(f's_cmp_eq_u32 s{sCNT}, 0'); e('s_cbranch_scc1 L_yok')
    e(f's_cmp_lt_u32 s{sT2}, 8'); e('s_cbranch_scc1 L_ywait_loop')
    e('s_branch L_yok')
    e('L_code_end:')
    e('s_endpgm')

def desc(name, vgpr, acc, sgpr):
    return f""".p2align 6
.amdhsa_kernel {name}
  .amdhsa_next_free_vgpr {vgpr}
  .amdhsa_next_free_sgpr {sgpr}
  .amdhsa_accum_offset {acc}
  .amdhsa_group_segment_fixed_size 0
  .amdhsa_kernarg_size 88
  .amdhsa_user_sgpr_count 2
  .amdhsa_user_sgpr_kernarg_segment_ptr 1
  .amdhsa_system_sgpr_workgroup_id_x 1
  .amdhsa_float_denorm_mode_32 3
.end_amdhsa_kernel
"""

HEAD = """; Fused LayerNorm + Q projection + ReLU FFN + GQA attention + output projection + gated combine.
; kernarg: 0 x | 8 k | 16 v | 24 wq | 32 wo | 40 B_x (unused) | 48 w1 | 56 w2 | 64 out | 72 debug | 80 ws
; @launch grid=(256,1,1) block=(256,1,1) lds=163840
.amdgcn_target "amdgcn-amd-amdhsa--gfx950"
"""
gen_main()
errs = check(A.trace)
out = HEAD + A.text() + '.section .rodata,"a"\n' + desc('recurrent_scan__gqa_block_cached__dense_activation_relu__prompt_kernel', 512, 256, 100)
open(sys.argv[1], 'w').write(out)
print('errors:', len(errs), 'lines:', out.count('\n'))
```
